```python
import torch

def _softmax(x, axis=-1):
    return torch.softmax(x, dim=axis)
def _gelu(x):
    return torch.nn.functional.gelu(x, approximate="tanh")
def _silu(x):
    return torch.nn.functional.silu(x)
def _sigmoid(x):
    return torch.sigmoid(x)
def _layernorm(x, axis=-1, eps=1e-5):
    m = x.mean(dim=axis, keepdim=True)
    v = x.var(dim=axis, keepdim=True, unbiased=False)
    return (x - m) / torch.sqrt(v + eps)
def _scatter_add(tgt, idx, src, axis=0):
    return tgt.clone().index_add_(axis, idx, src)
def _segment_sum(src, seg, n):
    out = torch.zeros((n,) + src.shape[1:], dtype=src.dtype)
    return out.index_add_(0, seg, src)
def _pad(x, pw):
    flat = tuple(v for pair in reversed(pw) for v in pair)
    return torch.nn.functional.pad(x, flat)

kernel_name = 'concat_heads__mha_block_cached__gqa_block_cached__near_ridge'

def setup_inputs():

    _w = (lambda a: (lambda t: t.to(torch.bfloat16) if t.is_floating_point() else t)(torch.as_tensor(a)))
    def _A_setup():
        B, Sq, D = 16, 144, 640
        H, Sk, Dh = 32, 512, 192
        return {
            "x": _w((lambda *s: torch.randn(*s, dtype=torch.bfloat16) * 0.8)(B, Sq, D)),
            "k_cache": _w((lambda *s: torch.randn(*s, dtype=torch.bfloat16) * 0.8)(B, H, Sk, Dh)),
            "v_cache": _w((lambda *s: torch.randn(*s, dtype=torch.bfloat16) * 0.05)(B, H, Sk, Dh)),
            "wq": _w((lambda *s: torch.randn(*s, dtype=torch.bfloat16) * 0.8)(D, H * Dh) * (D ** -0.5)),
            "wo": _w((lambda *s: torch.randn(*s, dtype=torch.bfloat16) * 0.05)(H * Dh, D) * ((H * Dh) ** -0.5)),
        }
    _A_in = _A_setup()

    def _B_setup():
        B, Sq, D = 16, 144, 640
        Hq, Hkv, Sk, Dh = 32, 32, 512, 192
        assert Hq % Hkv == 0, (Hq, Hkv)
        return {
            "x": _w((lambda *s: torch.randn(*s, dtype=torch.bfloat16) * 0.8)(B, Sq, D)),
            "k_cache": _w((lambda *s: torch.randn(*s, dtype=torch.bfloat16) * 0.8)(B, Hkv, Sk, Dh)),
            "v_cache": _w((lambda *s: torch.randn(*s, dtype=torch.bfloat16) * 0.05)(B, Hkv, Sk, Dh)),
            "wq": _w((lambda *s: torch.randn(*s, dtype=torch.bfloat16) * 0.8)(D, Hq * Dh) * (D ** -0.5)),
            "wo": _w((lambda *s: torch.randn(*s, dtype=torch.bfloat16) * 0.05)(Hq * Dh, D) * ((Hq * Dh) ** -0.5)),
        }
    _B_in = _B_setup()

    return {
        "A_x": _A_in["x"],
        "A_k_cache": _A_in["k_cache"],
        "A_v_cache": _A_in["v_cache"],
        "A_wq": _A_in["wq"],
        "A_wo": _A_in["wo"],
        "B_x": _B_in["x"],
        "B_k_cache": _B_in["k_cache"],
        "B_v_cache": _B_in["v_cache"],
        "B_wq": _B_in["wq"],
        "B_wo": _B_in["wo"],
    }

def reference(A_x, A_k_cache, A_v_cache, A_wq, A_wo, B_x, B_k_cache, B_v_cache, B_wq, B_wo):
    def _A_ref(x, k_cache, v_cache, wq, wo):
        B, Sq, D = x.shape
        H, Dh = 32, 192
        q = (lambda x, *d: x.permute(*d))((x @ wq).reshape(B, Sq, H, Dh), 0, 2, 1, 3)
        scores = torch.einsum("bhqd,bhkd->bhqk", q, k_cache) * (Dh ** -0.5)
        p = _softmax(scores, axis=-1)
        o = torch.einsum("bhqk,bhkd->bhqd", p, v_cache)
        return (lambda x, *d: x.permute(*d))(o, 0, 2, 1, 3).reshape(B, Sq, H * Dh) @ wo

    def _B_ref(x, k_cache, v_cache, wq, wo):
        B, Sq, D = x.shape
        Hq, Dh = 32, 192
        Hkv = k_cache.shape[1]
        rep = Hq // Hkv
        q = (lambda x, *d: x.permute(*d))((x @ wq).reshape(B, Sq, Hq, Dh), 0, 2, 1, 3)
        k = (lambda x, n, axis: torch.repeat_interleave(x, n, dim=axis))(k_cache, rep, axis=1)
        v = (lambda x, n, axis: torch.repeat_interleave(x, n, dim=axis))(v_cache, rep, axis=1)
        scores = torch.einsum("bhqd,bhkd->bhqk", q, k) * (Dh ** -0.5)
        p = _softmax(scores, axis=-1)
        o = torch.einsum("bhqk,bhkd->bhqd", p, v)
        return (lambda x, *d: x.permute(*d))(o, 0, 2, 1, 3).reshape(B, Sq, Hq * Dh) @ wo

    a = _A_ref(A_x, A_k_cache, A_v_cache, A_wq, A_wo)
    b = _B_ref(B_x, B_k_cache, B_v_cache, B_wq, B_wo)
    return torch.concatenate([a, b], axis=-1)
```

```python
import sys
from kgen import *
LDS2 = 147456
OLDFL = ""
WOFL = ""

def k2():
    sW = S(3)
    WO, O, OUT = S(28, 4), S(32, 4), S(36, 4)
    sI = S(48); sHo = S(49); sHw = S(50)
    t0, t1, t2, t3, t4 = S(51), S(52), S(53), S(54), S(55)
    so = [S(56), S(57), S(58), S(59)]
    mW = S(62)
    sMT, sNT, sBR = S(63), S(64), S(65)
    vo4 = [V(1 + i) for i in range(6)]
    vo2 = [V(7 + i) for i in range(6)]
    vw = [V(13 + i) for i in range(4)]
    vr = [V(17 + i) for i in range(8)]
    vrw = [V(25 + i) for i in range(3)]
    vrr, vout = V(28), V(29)
    def acc(u, i): return A((u * 6 + i) * 4, 4)
    def fA(k, u): return A(192 + ((k & 1) * 8 + u) * 4, 4)
    def fB(k, i): return V(64 + ((k % 4) * 6 + i) * 4, 4)
    soi = [0]
    def nso():
        soi[0] = (soi[0] + 1) % 4
        return so[soi[0]]
    KS = [("A", 0), ("A", 1), ("B", 0), ("A", 2), ("A", 3), ("B", 2)]
    def hoff(k): return (k // 6) * 4
    def ld_B(k):
        typ, wp = KS[k % 6]; g = []
        if typ == "A":
            s_ = nso()
            g = [[vld(fB(k, i), vo4[i], O, s_, 0, OLDFL)] for i in range(6)]
            g[0] = [salu("s_add_u32", s_, sHo, hoff(k) * 55296 + wp * 13824)] + g[0]
        else:
            for hf in range(2):
                s_ = nso()
                h = [[vld(fB(k, i).sub(2 * hf, 2), vo2[i], O, s_, 0, OLDFL)] for i in range(6)]
                h[0] = [salu("s_add_u32", s_, sHo, hoff(k) * 55296 + (wp + hf) * 13824)] + h[0]
                g += h
        return g
    def dma_w(k):
        typ, wp = KS[k % 6]; g = []
        for hf in range(2):
            row = (48 * wp + 16 * hf) if typ == "A" else (48 * (wp + hf) + 32)
            s_ = nso()
            h = [[dma(vw[i], WO, s_, 1024 * i, WOFL, tag=f"w{k%12}")] for i in range(4)]
            h[0] = [salu("s_add_u32", "m0", mW, (k % 4) * 8192 + hf * 4096), salu("s_add_u32", s_, sHw, (hoff(k) * 192 + row) * 1280)] + h[0]
            g += h
        return g
    def rd_A(k):
        return [dsr("ds_read_b64_tr_b16", fA(k, u).sub(2 * hf, 2), vr[u], (k % 4) * 8192 + hf * 4096, tag=f"r{k%12}") for u in range(8) for hf in range(2)]
    def flat(groups): return [i for g in groups for i in g]

    P = []; e = P.append
    e(raw("s_cmp_ge_u32 s2, 240")); e(raw("s_cbranch_scc1 L2_end"))
    e(raw("s_load_dwordx2 s[4:5], s[0:1], 32")); e(raw("s_load_dwordx2 s[6:7], s[0:1], 72"))
    e(raw("s_load_dwordx2 s[8:9], s[0:1], 80")); e(raw("s_load_dwordx2 s[10:11], s[0:1], 96"))
    L, Iq, G, R_, C_, T1, T2, T3, T4 = [V(64 + i) for i in range(9)]
    e(valu("v_lshrrev_b32", T1, 6, V(0))); e(rfl(sW, T1))
    e(valu("v_and_b32", L, 63, V(0))); e(valu("v_and_b32", Iq, 15, L)); e(valu("v_lshrrev_b32", G, 4, L))
    e(valu("v_lshrrev_b32", R_, 2, Iq)); e(valu("v_and_b32", C_, 3, L))
    e(salu("s_and_b32", t0, S(2), 7)); e(salu("s_lshr_b32", t1, S(2), 3))
    e(salu("s_lshr_b32", sBR, t0, 2)); e(salu("s_and_b32", t0, t0, 3)); e(salu("s_mul_i32", t0, t0, 6))
    e(salu("s_mul_i32", t2, t1, 52)); e(salu("s_lshr_b32", t2, t2, 8))
    e(salu("s_add_u32", sMT, t0, t2)); e(salu("s_mul_i32", t2, t2, 5)); e(salu("s_sub_u32", sNT, t1, t2))
    e(salu("s_lshl_b32", mW, sW, 15))
    for i in range(6):
        e(salu("s_mul_i32", t0, sMT, 6)); e(salu("s_add_u32", t0, t0, i))
        e(salu("s_mul_i32", t1, t0, 57)); e(salu("s_lshr_b32", t1, t1, 9))
        e(salu("s_mul_i32", t2, t1, 9)); e(salu("s_sub_u32", t2, t0, t2))
        e(salu("s_mul_i32", t1, t1, 32 * 55296))
        e(salu("s_lshl_b32", t3, t2, 10)); e(salu("s_add_u32", t3, t3, t1)); e(valu("v_lshl_add_u32", vo4[i], L, 4, t3))
        e(salu("s_lshl_b32", t3, t2, 9)); e(salu("s_add_u32", t3, t3, t1)); e(salu("s_add_u32", t3, t3, 9216)); e(valu("v_lshl_add_u32", vo2[i], L, 3, t3))
    e(salu("s_lshl_b32", t0, sNT, 8))
    for i in range(4):
        e(valu("v_add_u32", T1, 4 * i, G))
        e(valu("v_and_b32", T2, 7, T1)); e(valu("v_lshlrev_b32", T2, 1, T2)); e(valu("v_xor_b32", T2, T2, Iq))
        e(valu("v_mul_u32_u24", T1, 1280, T1)); e(valu("v_lshl_add_u32", T1, T2, 4, T1)); e(valu("v_add_u32", T1, t0, T1))
        e(valu("v_subrev_u32", vw[i], 1024 * i, T1))
    e(valu("v_lshl_add_u32", T1, G, 2, R_)); e(valu("v_and_b32", T2, 7, T1))
    e(valu("v_lshlrev_b32", T1, 8, T1)); e(valu("v_lshl_add_u32", T1, C_, 3, T1)); e(valu("v_add_u32", T1, mW, T1))
    for u in range(8):
        e(salu("s_lshl_b32", t0, sW, 1)); e(salu("s_add_u32", t0, t0, u)); e(salu("s_and_b32", t0, t0, 7))
        e(valu("v_xor_b32", T3, t0, T2)); e(valu("v_lshl_add_u32", vr[u], T3, 5, T1))
    for d in range(1, 4):
        e(salu("s_add_u32", t0, sW, d)); e(salu("s_and_b32", t0, t0, 3)); e(salu("s_mul_i32", t0, t0, 36864)); e(salu("s_add_u32", t0, t0, (d - 1) * 12288))
        e(valu("v_lshl_add_u32", vrw[d - 1], L, 4, t0))
    e(salu("s_mul_i32", t0, sW, 36864)); e(valu("v_lshl_add_u32", vrr, L, 4, t0))
    e(salu("s_mul_i32", t0, sMT, 96 * 2560)); e(salu("s_mul_i32", t1, sBR, 1280)); e(salu("s_add_u32", t0, t0, t1))
    e(salu("s_lshl_b32", t1, sNT, 8)); e(salu("s_add_u32", t0, t0, t1)); e(salu("s_lshl_b32", t1, sW, 6)); e(salu("s_add_u32", t0, t0, t1))
    e(valu("v_mul_u32_u24", T1, 2560, Iq)); e(valu("v_and_b32", T2, 1, G)); e(valu("v_lshl_add_u32", T1, T2, 5, T1))
    e(valu("v_lshrrev_b32", T2, 1, G)); e(valu("v_lshl_add_u32", T1, T2, 4, T1)); e(valu("v_add_u32", vout, t0, T1))
    e(raw("s_waitcnt lgkmcnt(0)"))
    e(scmp("s_cmp_eq_u32", sBR, 0)); e(salu("s_cselect_b64", S(28, 2), S(4, 2), S(6, 2)))
    e(salu("s_mov_b32", S(30), 7864320)); e(salu("s_mov_b32", S(31), "0x20000"))
    e(salu("s_mul_i32", t0, sBR, 28311552)); e(salu("s_add_u32", S(32), S(10), t0)); e(salu("s_addc_u32", S(33), S(11), 0))
    e(salu("s_mov_b32", S(34), 28311552)); e(salu("s_mov_b32", S(35), "0x20000"))
    e(salu("s_mov_b32", S(36), S(8))); e(salu("s_mov_b32", S(37), S(9))); e(salu("s_mov_b32", S(38), 5898240)); e(salu("s_mov_b32", S(39), "0x20000"))
    e(salu("s_mul_i32", sHo, sW, 55296)); e(salu("s_mul_i32", sHw, sW, 192 * 1280)); e(salu("s_mov_b32", sI, 0))
    for r in range(192): e(accwr(A(r), 0))
    P += flat(dma_w(0) + ld_B(0) + dma_w(1) + ld_B(1) + dma_w(2) + ld_B(2) + dma_w(3))
    P += [waitvm("w0")] + rd_A(0)

    B = []
    for k in range(12):
        mf = [mfma(acc(u, i), fA(k, u), fB(k, i)) for u in range(8) for i in range(6)]
        fixed = {}
        ra = rd_A(k + 1)
        for n, r in enumerate(ra): fixed[1 + 2 * n] = [r]
        fixed[1] = [waitvm(f"w{(k+1)%12}")] + fixed[1]
        dw = dma_w(k + 4); lb = ld_B(k + 3)
        dw[0] = [waitlg(f"r{k%12}")] + dw[0]
        pos = [g for g in range(48) if g not in fixed]
        for grp, g in zip(dw + lb, pos): fixed[g] = grp
        B += weave(mf, None, None, fixed)
    tail = ["s_add_u32 s49, s49, %d" % (8 * 55296), "s_add_u32 s50, s50, %d" % (8 * 192 * 1280),
            "s_add_u32 s48, s48, 1", "s_cmp_lt_u32 s48, 4", "s_cbranch_scc1 L2_loop"]
    E = [waitvm(), waitlg(), barrier()]
    for d in range(1, 4):
        for ul in range(2):
            for i in range(6):
                E.append(dsw("ds_write_b128", vrw[d - 1], acc(2 * d + ul, i), (ul * 6 + i) * 1024))
    for ul in range(2):
        for i in range(6):
            for r in range(4): E.append(accrd(V(64 + (ul * 6 + i) * 4 + r), acc(ul, i).sub(r)))
    E += [waitlg(), barrier()]
    for i in range(6):
        for ul in range(2):
            for d in range(3):
                E.append(dsr("ds_read_b128", V(112 + (((i & 1) * 2 + ul) * 3 + d) * 4, 4), vrr, d * 12288 + (ul * 6 + i) * 1024))
        pk = V(160 + 4 * (i & 1), 4)
        for ul in range(2):
            t = V(64 + (ul * 6 + i) * 4, 4)
            for d in range(3):
                s_ = V(112 + (((i & 1) * 2 + ul) * 3 + d) * 4, 4)
                for r in range(4): E.append(valu("v_add_f32", t.sub(r), t.sub(r), s_.sub(r)))
            E.append(valu("v_cvt_pk_bf16_f32", pk.sub(2 * ul), t.sub(0), t.sub(1)))
            E.append(valu("v_cvt_pk_bf16_f32", pk.sub(2 * ul + 1), t.sub(2), t.sub(3)))
        E.append(permswap("v_permlane16_swap_b32", pk.sub(0), pk.sub(2)))
        E.append(permswap("v_permlane16_swap_b32", pk.sub(1), pk.sub(3)))
        E.append(salu("s_mov_b32", t0, i * 16 * 2560))
        E.append(vst(pk, vout, OUT, t0, 0))
    E.append(waitvm())
    out = []
    bs = build_loop(P, B, E, "L2_loop", tail, out)
    out.append("L2_end:"); out.append("s_endpgm")
    sys.stderr.write("k2 body stats: %s\n" % bs)
    return out
```

```python
class Reg:
    __slots__ = ("k", "i", "n")
    def __init__(s, k, i, n=1):
        s.k, s.i, s.n = k, i, n
        assert i >= 0 and (k == "s" or i + n <= 256), (k, i, n)
    def __str__(s):
        return f"{s.k}{s.i}" if s.n == 1 else f"{s.k}[{s.i}:{s.i+s.n-1}]"
    __repr__ = __str__
    def regs(s):
        return [(s.k, s.i + j) for j in range(s.n)]
    def sub(s, off, n=1):
        assert off + n <= s.n
        return Reg(s.k, s.i + off, n)

def V(i, n=1): return Reg("v", i, n)
def A(i, n=1): return Reg("a", i, n)
def S(i, n=1): return Reg("s", i, n)
M0 = ("m0", 0)

def _rs(*ops):
    out = []
    for o in ops:
        if isinstance(o, Reg): out += o.regs()
        elif isinstance(o, Neg): out += o.r.regs()
    return out

class Neg:
    def __init__(s, r): s.r = r
    def __str__(s): return "-" + str(s.r)

class I:
    __slots__ = ("text", "kind", "rd", "wr", "tag", "tags", "srcc", "wide", "cmt")
    def __init__(s, text, kind, rd=(), wr=(), tag=None, tags=None, srcc=(), wide=False):
        s.text, s.kind, s.rd, s.wr, s.tag, s.tags, s.srcc, s.wide = text, kind, list(rd), list(wr), tag, tags, list(srcc), wide

def mfma(d, a, b, c=None):
    if c is None: c = d
    cs = c if isinstance(c, Reg) else 0
    return I(f"v_mfma_f32_16x16x32_bf16 {d}, {a}, {b}, {cs}", "mfma", rd=_rs(a, b), wr=_rs(d), srcc=_rs(c) if isinstance(c, Reg) else [])

def valu(op, d, *srcs, kind="valu", rmw=False):
    rd = _rs(*srcs) + (_rs(d) if rmw else [])
    return I(f"{op} {d}, " + ", ".join(str(x) for x in srcs), kind, rd=rd, wr=_rs(d))
def trans(op, d, *srcs): return valu(op, d, *srcs, kind="trans")
def permswap(op, a, b): return I(f"{op} {a}, {b}", "perm", rd=_rs(a, b), wr=_rs(a, b))
def accrd(d, a): return valu("v_accvgpr_read_b32", d, a)
def accwr(a, s): return valu("v_accvgpr_write_b32", a, s)
def rfl(d, s): return I(f"v_readfirstlane_b32 {d}, {s}", "rfl", rd=_rs(s), wr=_rs(d))

def salu(op, d, *srcs):
    wr = [M0] if d == "m0" else _rs(d)
    rd = _rs(*srcs) + ([M0] if "m0" in [str(x) for x in srcs] else [])
    return I(f"{op} {d}, " + ", ".join(str(x) for x in srcs), "salu", rd=rd, wr=wr)
def scmp(op, a, b): return I(f"{op} {a}, {b}", "salu", rd=_rs(a, b))
def raw(text, kind="raw"): return I(text, kind)

def _off(o):
    return f" offset:{o}" if o else ""
def dsr(op, d, addr, off=0, tag=None):
    assert 0 <= off < 65536, off
    return I(f"{op} {d}, {addr}{_off(off)}", "dsr", rd=_rs(addr), wr=_rs(d), tag=tag)
def dsw(op, addr, data, off=0, tag=None):
    assert 0 <= off < 65536, off
    return I(f"{op} {addr}, {data}{_off(off)}", "dsw", rd=_rs(addr, data), tag=tag, wide=data.n >= 3)
def dma(voff, srd, soff, off=0, fl="", tag=None):
    assert 0 <= off < 4096, off
    fl = (" " + fl) if fl else ""
    return I(f"buffer_load_dwordx4 {voff}, {srd}, {soff} offen{_off(off)}{fl} lds", "dma", rd=_rs(voff, srd, soff) + [M0], tag=tag)
def vld(d, voff, srd, soff, off=0, fl="", tag=None):
    assert 0 <= off < 4096, off
    fl = (" " + fl) if fl else ""
    op = {1: "dword", 2: "dwordx2", 4: "dwordx4"}[d.n]
    return I(f"buffer_load_{op} {d}, {voff}, {srd}, {soff} offen{_off(off)}{fl}", "vld", rd=_rs(voff, srd, soff), wr=_rs(d), tag=tag)
def vst(data, voff, srd, soff, off=0, fl="", tag=None):
    assert 0 <= off < 4096, off
    fl = (" " + fl) if fl else ""
    op = {1: "dword", 2: "dwordx2", 4: "dwordx4"}[data.n]
    i = I(f"buffer_store_{op} {data}, {voff}, {srd}, {soff} offen{_off(off)}{fl}", "vst", rd=_rs(data, voff, srd, soff), tag=tag, wide=data.n >= 3)
    return i
def waitvm(*tags): return I("", "waitvm", tags=list(tags))
def waitlg(*tags): return I("", "waitlg", tags=list(tags))
def barrier(): return I("s_barrier", "bar")
def nop(n): return I(f"s_nop {n}", "nop", tag=n)

VALU_KINDS = ("valu", "trans", "perm", "rfl")
MEM_KINDS = ("dsr", "dsw", "dma", "vld", "vst")

class State:
    def __init__(s):
        s.lg = []
        s.vm = []
    def copy(s):
        t = State(); t.lg = list(s.lg); t.vm = list(s.vm); return t
    def sig(s):
        return ([t for _, t in s.lg], [t for _, t in s.vm])

def compute_waits(insts, st, forced):
    st = st.copy()
    for idx, ins in enumerate(insts):
        nv = nl = None
        touched = set(ins.rd) | set(ins.wr) | set(ins.srcc)
        if ins.kind == "waitvm":
            if not ins.tags: nv = 0 if st.vm else None
            else:
                for j, (_, t) in enumerate(st.vm):
                    if t in ins.tags: nv = len(st.vm) - 1 - j
        elif ins.kind == "waitlg":
            if not ins.tags: nl = 0 if st.lg else None
            else:
                for j, (_, t) in enumerate(st.lg):
                    if t in ins.tags: nl = len(st.lg) - 1 - j
        elif touched:
            for j, (r, _) in enumerate(st.vm):
                if r & touched: nv = len(st.vm) - 1 - j
            for j, (r, _) in enumerate(st.lg):
                if r & touched: nl = len(st.lg) - 1 - j
        if nl is not None and nl > 15: nl = 15
        if nv is not None and nv > 63: nv = 63
        f = forced.get(idx)
        if f:
            if f[0] is not None: nv = f[0] if nv is None else min(nv, f[0])
            if f[1] is not None: nl = f[1] if nl is None else min(nl, f[1])
        if nv is not None or nl is not None:
            forced[idx] = [nv, nl]
            if nv is not None and len(st.vm) > nv: st.vm = st.vm[len(st.vm) - nv:]
            if nl is not None and len(st.lg) > nl: st.lg = st.lg[len(st.lg) - nl:]
        if ins.kind in ("dsr", "dsw"): st.lg.append((set(ins.wr), ins.tag))
        elif ins.kind in ("dma", "vld", "vst"): st.vm.append((set(ins.wr), ins.tag))
    return st

def emit(insts, forced, out, stats=None):
    pos = 0
    lastw = {}
    lastc = {}
    lastst = {}
    pend = [None, None]
    for idx, ins in enumerate(insts):
        f = forced.get(idx)
        if f:
            for k in range(2):
                if f[k] is not None: pend[k] = f[k] if pend[k] is None else min(pend[k], f[k])
        if ins.kind in ("waitvm", "waitlg"):
            continue
        if pend[0] is not None or pend[1] is not None:
            w = []
            if pend[0] is not None: w.append(f"vmcnt({pend[0]})")
            if pend[1] is not None: w.append(f"lgkmcnt({pend[1]})")
            out.append("s_waitcnt " + " ".join(w)); pos += 1
            pend = [None, None]
            if stats is not None: stats["wait"] = stats.get("wait", 0) + 1
        need = 0
        def req(p, n):
            nonlocal need
            d = pos - p - 1
            if n - d > need: need = n - d
        k = ins.kind
        for r in list(ins.rd) + list(ins.srcc):
            lw = lastw.get(r)
            if lw is None: continue
            p, pk, pd = lw
            if pk == "mfma":
                if k == "mfma" and r in ins.srcc and r not in ins.rd:
                    if pd != tuple(ins.srcc): req(p, 6)
                else: req(p, 8)
            elif pk in VALU_KINDS:
                if r[0] == "s":
                    if k in ("dma", "vld", "vst"): req(p, 5)
                    elif k in VALU_KINDS: req(p, 2)
                    else: req(p, 1)
                else:
                    if k == "mfma": req(p, 2)
                    elif k == "perm": req(p, 2)
                    elif k == "rfl": req(p, 1)
                    if pk == "trans" and k != "trans": req(p, 1)
            elif pk == "salu" and r == M0 and k == "dma": req(p, 1)
        for r in ins.wr:
            lw = lastw.get(r)
            if lw is not None and lw[1] == "mfma" and k != "mfma": req(lw[0], 8)
            if lw is not None and lw[1] == "mfma" and k == "mfma" and lw[2] != tuple(ins.wr): req(lw[0], 6)
            if r in lastc and k != "mfma": req(lastc[r], 3)
            if r in lastst: req(lastst[r], 2)
        while need > 0:
            n = min(need, 16)
            out.append(f"s_nop {n-1}"); pos += n; need -= n
            if stats is not None: stats["nop"] = stats.get("nop", 0) + n
        out.append(ins.text)
        if stats is not None: stats[k] = stats.get(k, 0) + 1
        for r in ins.wr: lastw[r] = (pos, k, tuple(ins.wr))
        for r in ins.srcc: lastc[r] = pos
        if ins.wide:
            for r in ins.rd: lastst[r] = pos
        pos += (ins.tag + 1) if k == "nop" else (0 if k == "label" else 1)
    if pend[0] is not None or pend[1] is not None:
        w = []
        if pend[0] is not None: w.append(f"vmcnt({pend[0]})")
        if pend[1] is not None: w.append(f"lgkmcnt({pend[1]})")
        out.append("s_waitcnt " + " ".join(w))

def build_loop(pro, body, epi, label, loop_tail, out, stats=None):
    fp = {}
    sp = compute_waits(pro, State(), fp)
    fb = {}
    for _ in range(6):
        before = repr(sorted(fb.items()))
        e1 = compute_waits(body, sp, fb)
        e2 = compute_waits(body, e1, fb)
        e3 = compute_waits(body, e2, fb)
        if repr(sorted(fb.items())) == before: break
    else:
        raise RuntimeError("waits did not converge")
    fe = {}
    compute_waits(epi, e1, fe); compute_waits(epi, e2, fe); compute_waits(epi, e1, fe)
    emit(pro, fp, out, stats)
    out.append("s_nop 7")
    out.append(".p2align 3")
    out.append(f"{label}:")
    bs = {}
    emit(body, fb, out, bs)
    out.append("s_nop 7")
    out.extend(loop_tail)
    emit(epi, fe, out, stats)
    return bs

def weave(mf, mem=None, fill=None, fixed=None, rate=1.0, start=0):
    out = []
    mem = list(mem or []); fixed = fixed or {}
    credit = 0.0
    for g, m in enumerate(mf):
        out.append(m)
        used = False
        if g in fixed:
            out.extend(fixed[g]); used = True
        if not used and mem and g >= start:
            out.extend(mem.pop(0)); used = True
        if fill:
            credit += rate
            while fill and credit > 0:
                f = fill.pop(0)
                out.append(f)
                credit -= cost(f)
    for grp in mem: out.extend(grp)
    return out

def cost(i):
    if i.kind == "trans": return 2
    if i.kind in ("waitvm", "waitlg"): return 0
    if i.kind == "dsw": return 2
    return 1
```

```python
import sys, struct, math
sys.path.insert(0, "tools")
from kgen import *

NAME = "concat_heads__mha_block_cached__gqa_block_cached__near_ridge"
def f32bits(x): return struct.unpack("<I", struct.pack("<f", x))[0]

QP = 0; QS = 18432
RA = 55296; KB = 24832
RB = 104960
EXM = 154112; EXS = 154880
LDS1 = 157952
VSLOT = [RB, RB + 24576, RA, RA + KB]

KVFL = "nt"
WQFL = ""
XFL = ""
OSTFL = "nt"

def k1():
    sW = S(3)
    X, WQ, K, Vd, O = S(28, 4), S(32, 4), S(36, 4), S(40, 4), S(44, 4)
    sR, sH, sG = S(48), S(49), S(50)
    t0, t1, t2, t3 = S(51), S(52), S(53), S(54)
    so = [S(56), S(57), S(58), S(59)]
    mX, mWQ, mK, mV = S(62), S(63), S(64), S(65)
    sC, s4k, s8k = S(66), S(67), S(68)
    vx = [V(1 + i) for i in range(5)]
    vw = [V(6 + i) for i in range(3)]
    vk = [V(9 + i) for i in range(3)]
    vv = [V(12 + i) for i in range(3)]
    vxr = [V(15), V(16)]
    vwr = [V(17 + i) for i in range(3)]
    vvr = [V(20 + i) for i in range(3)]
    vkr, vqw, vlin, vpw, vem, ves, vesr, vso4, vso2 = [V(23 + i) for i in range(9)]
    MX = 32
    SM = 44
    TP = 56
    mx = [V(MX + i) for i in range(12)]
    sm = [V(SM + i) for i in range(12)]
    tp = [V(TP + i) for i in range(8)]
    def St(j, qt):
        if j < 4: return V(64 + (j * 9 + qt) * 4, 4)
        if j < 6: return A(((j - 4) * 9 + qt) * 4, 4)
        if j == 6: return A(72 + qt * 4, 4) if qt < 6 else V(208 + (qt - 6) * 4, 4)
        return V(220 + qt * 4, 4)
    KR = [24, 48, 72, 0, 96, 120, 144, 168]
    def Kf(j, T): return A(KR[j] + 4 * T, 4)
    def Qacc(j, qt): return V(64 + (j * 9 + qt) * 4, 4)
    def Oacc(j, qt): return A(148 + (j * 9 + qt) * 4, 4)
    def g1A(s, j): return V(172 + ((s & 1) * 3 + j) * 4, 4)
    def g1B(n): return V(196 + (n % 15) * 4, 4)
    def g3A(s, j): return A(((s & 1) * 3 + j) * 4, 4)
    def g3B(n): return A(96 + (n % 13) * 4, 4)
    def g2B(n): return A(192 + (n % 16) * 4, 4)

    soi = [0]
    def nso():
        soi[0] = (soi[0] + 1) % 4
        return so[soi[0]]

    def dma_x(p):
        slot = (p + 2) % 3; s_ = nso()
        g = [[salu("s_add_u32", "m0", mX, QP + slot * QS), salu("s_mov_b32", s_, p * 128),
              raw("s_mov_b32 exec_hi, 0", "salu"), dma(vx[0], X, s_, 0, XFL, tag=f"x{p}"), raw("s_mov_b32 exec_hi, -1", "salu")]]
        g += [[dma(vx[1 + i], X, s_, 512 + 1024 * i, XFL, tag=f"x{p}")] for i in range(4)]
        return g
    def dma_wq(s):
        s_ = nso()
        g = [[dma(vw[i], WQ, s_, 1024 * i, WQFL, tag=f"w{s}")] for i in range(3)]
        g[0] = [salu("s_add_u32", "m0", mWQ, (s % 4) * 12288), salu("s_mov_b32", s_, s * 32 * 12288)] + g[0]
        return g
    def dma_k(j):
        kb = (j + 4) % 8; g = []
        for hf in range(2):
            s_ = nso()
            h = [[dma(vk[i], K, s_, 1024 * i, KVFL, tag=f"k{j}")] for i in range(3)]
            h[0] = [salu("s_add_u32", "m0", mK, (j % 2) * KB + hf * 3136), salu("s_mov_b32", s_, kb * 24576 + hf * 3072)] + h[0]
            g += h
        return g
    def dma_v(c):
        g = []
        for hf in range(2):
            s_ = nso()
            h = [[dma(vv[i], Vd, s_, 1024 * i, KVFL, tag=f"v{c}")] for i in range(3)]
            h[0] = [salu("s_add_u32", "m0", mV, VSLOT[c % 4] + hf * 3072), salu("s_mov_b32", s_, c * 24576 + hf * 3072)] + h[0]
            g += h
        return g
    def rd_k(j):
        g = [[dsr("ds_read_b128", Kf(j, T), vkr, (j % 2) * KB + T * 64, tag=f"kr{j}")] for T in range(6)]
        g[0] = [waitvm(f"k{j}")] + g[0]
        return g
    def flat(groups): return [i for g in groups for i in g]

    def g1_readsB(s):
        p = s >> 1; slot = (p + 2) % 3
        return [dsr("ds_read_b128", g1B(s * 9 + qt), vxr[s & 1], QP + slot * QS + qt * 2048) for qt in range(9)]
    def g1_readsA(s):
        return [dsr("ds_read_b64_tr_b16", g1A(s, j).sub(2 * hf, 2), vwr[j], (s % 4) * 12288 + hf * 1536) for j in range(3) for hf in range(2)]
    def g3_readsB(k):
        c, ks = k >> 1, k & 1
        return [dsr("ds_read_b128", g3B(k * 9 + qt), vlin, QP + (c % 3) * QS + (ks * 9 + qt) * 1024) for qt in range(9)]
    def g3_readsA(k):
        c, ks = k >> 1, k & 1
        off = (VSLOT[c % 4] - (RB if c % 4 < 2 else RA)) + ks * 12288
        return [dsr("ds_read_b64_tr_b16", g3A(k, j).sub(2 * hf, 2), vvr[j], off + hf * 6144) for j in range(3) for hf in range(2)]

    def step27(mf, rB, rA, mem, fill, rate):
        fixed = {}
        for i, r in enumerate(rB): fixed[3 * i] = [r]
        for i, r in enumerate(rA): fixed[3 * i + 1] = [r]
        mem = list(mem)
        nfree = 27 - len(fixed)
        while len(mem) > nfree:
            mem = [mem[0] + mem[1]] + mem[2:] if False else merge_once(mem, len(mem) - nfree)
        return weave(mf, mem, fill, fixed, rate)
    def merge_once(mem, k):
        out = []; i = 0
        while i < len(mem):
            if k > 0 and i + 1 < len(mem):
                out.append(mem[i] + mem[i + 1]); i += 2; k -= 1
            else:
                out.append(mem[i]); i += 1
        return out

    def set_next(rn):
        L = [scmp("s_cmp_lt_u32", rn, 2),
             salu("s_cselect_b64", S(28, 2), S(4, 2), S(14, 2)),
             salu("s_cselect_b64", S(32, 2), S(10, 2), S(20, 2)),
             salu("s_cselect_b64", S(36, 2), S(6, 2), S(16, 2)),
             salu("s_and_b32", t0, rn, 1), salu("s_lshl_b32", t0, t0, 3), salu("s_add_u32", t0, t0, sG),
             salu("s_mul_i32", t1, t0, 184320),
             salu("s_add_u32", S(28), S(28), t1), salu("s_addc_u32", S(29), S(29), 0),
             salu("s_mul_i32", t1, sH, 384),
             salu("s_add_u32", S(32), S(32), t1), salu("s_addc_u32", S(33), S(33), 0),
             salu("s_sub_u32", t2, 7864320, t1),
             salu("s_lshl_b32", t0, t0, 5), salu("s_add_u32", t0, t0, sH), salu("s_mul_i32", t1, t0, 196608),
             salu("s_add_u32", S(36), S(36), t1), salu("s_addc_u32", S(37), S(37), 0),
             scmp("s_cmp_lt_u32", rn, 4),
             salu("s_cselect_b32", S(30), 184320, 0),
             salu("s_cselect_b32", S(34), t2, 0),
             salu("s_cselect_b32", S(38), 196608, 0)]
        return L
    def set_v():
        return [scmp("s_cmp_lt_u32", sR, 2),
                salu("s_cselect_b64", S(40, 2), S(8, 2), S(18, 2)),
                salu("s_and_b32", t0, sR, 1), salu("s_lshl_b32", t0, t0, 3), salu("s_add_u32", t0, t0, sG),
                salu("s_lshl_b32", t0, t0, 5), salu("s_add_u32", t0, t0, sH), salu("s_mul_i32", t1, t0, 196608),
                salu("s_add_u32", S(40), S(40), t1), salu("s_addc_u32", S(41), S(41), 0)]
    def set_o():
        return [salu("s_lshl_b32", t0, sR, 3), salu("s_add_u32", t0, t0, sG), salu("s_lshl_b32", t0, t0, 5),
                salu("s_add_u32", t0, t0, sH), salu("s_mul_i32", t1, t0, 55296),
                salu("s_add_u32", S(44), S(26), t1), salu("s_addc_u32", S(45), S(27), 0),
                salu("s_mov_b32", S(46), 55296)]

    def epilogue_fill():
        F = []
        sets = [(V(TP, 4), V(TP + 4, 4)), (V(MX, 4), V(MX + 4, 4))]
        for qt in range(9):
            pk, tm = sets[qt & 1]
            for j in range(3):
                for r in range(4): F.append(accrd(tm.sub(r), Oacc(j, qt).sub(r)))
                for r in range(4): F.append(valu("v_mul_f32", tm.sub(r), tm.sub(r), sm[qt]))
                if j < 2:
                    F.append(valu("v_cvt_pk_bf16_f32", pk.sub(2 * j), tm.sub(0), tm.sub(1)))
                    F.append(valu("v_cvt_pk_bf16_f32", pk.sub(2 * j + 1), tm.sub(2), tm.sub(3)))
                    if j == 1:
                        sof = [0, s4k, s8k][qt // 4]
                        F.append(vst(pk, vso4, O, sof, (qt % 4) * 1024, OSTFL, tag="ost"))
                else:
                    p2 = V(MX + 8 + 2 * (qt & 1), 2)
                    F.append(valu("v_cvt_pk_bf16_f32", p2.sub(0), tm.sub(0), tm.sub(1)))
                    F.append(valu("v_cvt_pk_bf16_f32", p2.sub(1), tm.sub(2), tm.sub(3)))
                    F.append(vst(p2, vso2, O, [0, s4k][qt // 8], (qt % 8) * 512, OSTFL, tag="ost"))
        return F
    def exp_fill(c):
        j = (c + 4) % 8; F = []
        for qt in range(9):
            t = St(j, qt)
            if t.k == "a":
                tm = V(TP + 4 * (qt & 1), 4)
                for r in range(4): F.append(accrd(tm.sub(r), t.sub(r)))
                t = tm
            for r in range(4): F.append(valu("v_fma_f32", t.sub(r), t.sub(r), sC, Neg(mx[qt])))
            for r in range(4): F.append(trans("v_exp_f32", t.sub(r), t.sub(r)))
            if c == 0:
                F.append(valu("v_add_f32", sm[qt], t.sub(0), t.sub(1)))
                rs = [2, 3]
            else: rs = [0, 1, 2, 3]
            for r in rs: F.append(valu("v_add_f32", sm[qt], sm[qt], t.sub(r)))
            F.append(valu("v_cvt_pk_bf16_f32", t.sub(0), t.sub(0), t.sub(1)))
            F.append(valu("v_cvt_pk_bf16_f32", t.sub(1), t.sub(2), t.sub(3)))
            F.append(dsw("ds_write_b64", vpw, t.sub(0, 2), QP + (c % 3) * QS + qt * 1024, tag=f"p{c}"))
        return F
    def max_tile(j, qt, k):
        t = St(j, qt); F = []
        if t.k == "a":
            tm = V(TP + 4 * (k & 1), 4)
            for r in range(4): F.append(accrd(tm.sub(r), t.sub(r)))
            t = tm
        if j == 0: F.append(valu("v_max_f32", mx[qt], t.sub(0), t.sub(1)))
        else: F.append(valu("v_max3_f32", mx[qt], mx[qt], t.sub(0), t.sub(1)))
        F.append(valu("v_max3_f32", mx[qt], mx[qt], t.sub(2), t.sub(3)))
        return F
    def sum_reduce():
        F = []
        for k in range(3):
            a, b, c_, d = sm[4 * k], sm[4 * k + 2], sm[4 * k + 1], sm[4 * k + 3]
            F.append(permswap("v_permlane32_swap_b32", a, b)); F.append(permswap("v_permlane32_swap_b32", c_, d))
            F.append(valu("v_add_f32", a, a, b)); F.append(valu("v_add_f32", c_, c_, d))
            F.append(permswap("v_permlane16_swap_b32", a, c_))
            F.append(valu("v_add_f32", a, a, c_))
            F.append(dsw("ds_write_b32", ves, a, k * 1024, tag="sumw"))
        return F
    def sum_final():
        F = []
        for qt in range(9): F.append(dsr("ds_read_b128", V(64 + 4 * qt, 4), vesr, qt * 256))
        for qt in range(9):
            t = V(64 + 4 * qt, 4)
            F.append(valu("v_add_f32", t.sub(0), t.sub(0), t.sub(1)))
            F.append(valu("v_add_f32", t.sub(2), t.sub(2), t.sub(3)))
            F.append(valu("v_add_f32", t.sub(0), t.sub(0), t.sub(2)))
            F.append(trans("v_rcp_f32", sm[qt], t.sub(0)))
        return F
    def max_init():
        F = [valu("v_mov_b32", tp[r], "0xff800000") for r in range(4)]
        F += [dsw("ds_write_b128", vem, V(TP, 4), 16 * k, tag="mi") for k in range(3)]
        return F
    def sync(*vmtags):
        return ([waitvm(*vmtags)] if vmtags else []) + [waitlg(), barrier()]

    P = []
    e = P.append
    e(raw("s_cmp_ge_u32 s2, 256")); e(raw("s_cbranch_scc1 L1_end"))
    e(raw("s_load_dwordx16 s[4:19], s[0:1], 0")); e(raw("s_load_dwordx4 s[20:23], s[0:1], 64"))
    e(raw("s_load_dwordx2 s[26:27], s[0:1], 96"))
    L, Iq, G, R_, C_, T1, T2, T3, T4 = [V(64 + i) for i in range(9)]
    e(valu("v_lshrrev_b32", T1, 6, V(0))); e(rfl(sW, T1))
    e(valu("v_and_b32", L, 63, V(0))); e(valu("v_and_b32", Iq, 15, L)); e(valu("v_lshrrev_b32", G, 4, L))
    e(valu("v_lshrrev_b32", R_, 2, Iq)); e(valu("v_and_b32", C_, 3, L))
    e(salu("s_and_b32", t0, S(2), 7)); e(salu("s_lshr_b32", t1, S(2), 3))
    e(salu("s_and_b32", t2, t1, 3)); e(salu("s_lshl_b32", t0, t0, 2)); e(salu("s_add_u32", sH, t0, t2))
    e(salu("s_lshr_b32", sG, t1, 2)); e(salu("s_mov_b32", sR, 0))
    e(salu("s_mul_i32", mX, sW, 4608)); e(salu("s_mul_i32", mWQ, sW, 3072)); e(salu("s_add_u32", mWQ, mWQ, RB))
    e(salu("s_mul_i32", mK, sW, 6208)); e(salu("s_add_u32", mK, mK, RA)); e(salu("s_mul_i32", mV, sW, 6144))
    e(salu("s_mov_b32", sC, hex(f32bits(192 ** -0.5 * math.log2(math.e))))); e(salu("s_mov_b32", s4k, 4096)); e(salu("s_mov_b32", s8k, 8192))
    for r in (31, 35, 39, 43, 47): e(salu("s_mov_b32", S(r), "0x20000"))
    e(salu("s_mov_b32", S(42), 196608)); e(salu("s_mov_b32", S(46), 0))
    e(salu("s_mul_i32", t0, sW, 36))
    for i in range(5):
        e(valu("v_lshrrev_b32", T1, 3, L)); e(valu("v_add_u32", T1, t0, T1))
        if i: e(valu("v_add_u32", T1, 4 + 8 * (i - 1), T1))
        e(valu("v_bfe_u32", T2, T1, 1, 3)); e(valu("v_and_b32", T3, 7, L)); e(valu("v_xor_b32", T2, T2, T3))
        e(valu("v_mul_u32_u24", T1, 1280, T1)); e(valu("v_lshl_add_u32", vx[i], T2, 4, T1))
        if i: e(valu("v_subrev_u32", vx[i], 512 + 1024 * (i - 1), vx[i]))
    e(salu("s_and_b32", t1, sW, 1)); e(salu("s_lshl_b32", t1, t1, 1))
    e(salu("s_mul_i32", t2, sW, 8 * 12288)); e(salu("s_mul_i32", t3, sW, 6144))
    for i in range(3):
        e(valu("v_add_u32", T1, 64 * i, L)); e(valu("v_mul_u32_u24", T2, 2731, T1)); e(valu("v_lshrrev_b32", T2, 16, T2))
        e(valu("v_mul_u32_u24", T3, 24, T2)); e(valu("v_sub_u32", T1, T1, T3))
        e(valu("v_bfe_u32", T3, T2, 1, 1)); e(valu("v_or_b32", T3, t1, T3)); e(valu("v_lshlrev_b32", T3, 1, T3)); e(valu("v_xor_b32", T3, T3, T1))
        e(valu("v_mul_u32_u24", T4, 12288, T2)); e(valu("v_lshl_add_u32", T4, T3, 4, T4)); e(valu("v_add_u32", T4, t2, T4))
        e(valu("v_subrev_u32", vw[i], 1024 * i, T4))
        e(valu("v_bfe_u32", T3, T2, 1, 2)); e(valu("v_xor_b32", T3, T3, T1))
        e(valu("v_mul_u32_u24", T4, 384, T2)); e(valu("v_add_u32", T4, t3, T4)); e(valu("v_subrev_u32", T4, 1024 * i, T4))
        e(valu("v_lshl_add_u32", vk[i], T3, 4, T4))
        e(valu("v_bfe_u32", T3, T2, 1, 2)); e(valu("v_lshlrev_b32", T3, 1, T3)); e(valu("v_xor_b32", T3, T3, T1))
        e(valu("v_lshl_add_u32", vv[i], T3, 4, T4))
    e(valu("v_bfe_u32", T1, Iq, 1, 3)); e(valu("v_xor_b32", T1, T1, G)); e(valu("v_lshlrev_b32", T1, 4, T1))
    e(valu("v_lshl_add_u32", vxr[0], Iq, 7, T1)); e(valu("v_xor_b32", vxr[1], 64, vxr[0]))
    e(salu("s_mul_i32", t0, sW, 3))
    for j in range(3):
        e(salu("s_add_u32", t1, t0, j))
        e(valu("v_lshrrev_b32", T1, 1, R_)); e(valu("v_and_b32", T2, 1, G)); e(valu("v_lshl_add_u32", T1, T2, 1, T1))
        e(valu("v_xor_b32", T1, t1, T1)); e(valu("v_lshlrev_b32", T1, 5, T1)); e(valu("v_lshl_add_u32", T1, C_, 3, T1))
        e(valu("v_lshl_add_u32", T2, G, 3, R_)); e(valu("v_mul_u32_u24", T2, 384, T2)); e(valu("v_add_u32", T2, T1, T2))
        e(valu("v_add_u32", vwr[j], RB, T2))
        e(valu("v_lshl_add_u32", T2, G, 2, R_)); e(valu("v_mul_u32_u24", T2, 384, T2)); e(valu("v_add_u32", T2, T1, T2))
        e(valu("v_add_u32", vvr[j], RB, T2))
    e(valu("v_bfe_u32", T1, Iq, 1, 2)); e(valu("v_xor_b32", T1, T1, G)); e(valu("v_lshlrev_b32", T1, 4, T1))
    e(valu("v_mul_u32_u24", T2, 384, Iq)); e(valu("v_add_u32", T1, T1, T2)); e(valu("v_lshrrev_b32", T2, 3, Iq))
    e(valu("v_lshl_add_u32", T1, T2, 6, T1)); e(valu("v_add_u32", vkr, mK, T1))
    e(salu("s_mul_i32", t1, sW, 1536)); e(valu("v_lshrrev_b32", T1, 1, G)); e(valu("v_lshlrev_b32", T1, 8, T1))
    e(valu("v_lshl_add_u32", T1, Iq, 4, T1)); e(valu("v_and_b32", T2, 1, G)); e(valu("v_lshl_add_u32", T1, T2, 3, T1))
    e(valu("v_add_u32", vqw, t1, T1))
    e(valu("v_lshlrev_b32", vlin, 4, L))
    e(salu("s_lshr_b32", t1, sW, 1)); e(salu("s_mul_i32", t1, t1, 9216)); e(salu("s_and_b32", t2, sW, 1)); e(salu("s_lshl_b32", t2, t2, 3))
    e(salu("s_add_u32", t1, t1, t2)); e(valu("v_add_u32", vpw, t1, vlin))
    e(valu("v_mul_u32_u24", T1, 48, Iq)); e(valu("v_add_u32", vem, EXM, T1))
    e(salu("s_lshl_b32", t1, sW, 2)); e(salu("s_add_u32", t1, t1, EXS)); e(valu("v_add_u32", ves, t1, vlin))
    e(valu("v_lshlrev_b32", T1, 4, Iq)); e(valu("v_add_u32", vesr, EXS, T1))
    e(salu("s_mul_i32", t1, sW, 13824)); e(valu("v_add_u32", vso4, t1, vlin))
    e(salu("s_add_u32", t1, t1, 9216)); e(valu("v_lshlrev_b32", T1, 3, L)); e(valu("v_add_u32", vso2, t1, T1))
    for i in range(12): e(valu("v_mov_b32", sm[i], 0))
    e(raw("s_waitcnt lgkmcnt(0)"))
    e(salu("s_mov_b32", S(44), S(26))); e(salu("s_mov_b32", S(45), S(27)))
    P += set_next(sR)
    P += flat(dma_wq(0) + dma_x(0) + dma_wq(1) + dma_wq(2) + dma_wq(3) + dma_k(0) + dma_x(1) + dma_k(1))
    P += max_init()
    P += sync("w0", "x0")
    P += g1_readsA(0) + g1_readsB(0)

    B = []
    B += set_v()
    fill = epilogue_fill()
    kread = {2: 0, 5: 1, 8: 2, 11: 3, 14: 4, 17: 5}
    for s in range(20):
        tags = []
        if s + 1 < 20:
            tags.append(f"w{s+1}")
            if (s + 1) % 2 == 0: tags.append(f"x{(s+1)//2}")
        B += sync(*tags)
        mem = []
        if s + 4 < 20: mem += dma_wq(s + 4)
        if s == 0: mem += dma_x(2)
        if s % 2 == 1 and (s - 1) // 2 + 3 < 10: mem += dma_x((s - 1) // 2 + 3)
        if s in kread: mem += rd_k(kread[s])
        if s - 1 in kread: mem += dma_k(kread[s - 1] + 2)
        if s == 17: mem += dma_v(0)
        if s == 19: mem += dma_v(1)
        mf = [mfma(Qacc(j, qt), g1A(s, j), g1B(s * 9 + qt), 0 if s == 0 else None) for qt in range(9) for j in range(3)]
        if s < 19:
            B += step27(mf, g1_readsB(s + 1), g1_readsA(s + 1), mem, fill, 1.0)
            if s == 12:
                assert not fill, len(fill)
                B += set_o()
        else:
            fixed = {}
            def qw(qt):
                F = []
                for j in range(3):
                    t = Qacc(j, qt)
                    F.append(valu("v_cvt_pk_bf16_f32", t.sub(0), t.sub(0), t.sub(1)))
                    F.append(valu("v_cvt_pk_bf16_f32", t.sub(1), t.sub(2), t.sub(3)))
                    F.append(dsw("ds_write_b64", vqw, t.sub(0, 2), QP + qt * 6144 + j * 512, tag="q"))
                return F
            out = []
            mem = list(mem)
            for g, m in enumerate(mf):
                out.append(m)
                if mem: out += mem.pop(0)
                if g >= 8:
                    qt, j = (g - 8) // 3, (g - 8) % 3
                    out += qw(qt)[3 * j:3 * j + 3]
            for g in range(27, 35):
                qt, j = (g - 8) // 3, (g - 8) % 3
                out += qw(qt)[3 * j:3 * j + 3]
            B += out
    B += sync()
    def q_read(n):
        T, qt = (n // 9) % 6, n % 9
        return dsr("ds_read_b128", g2B(n), vlin, QP + (qt * 6 + T) * 1024)
    LA = 11
    for n in range(LA): B.append(q_read(n))
    for gi in range(2):
        mf = []; fixed = {}
        for T in range(6):
            for qt in range(9):
                n = (gi * 6 + T) * 9 + qt
                if n + LA < 108: fixed[len(mf)] = [q_read(n + LA)]
                for jj in range(4):
                    j = gi * 4 + jj
                    mf.append(mfma(St(j, qt), Kf(j, T), g2B(n), 0 if T == 0 else None))
        if gi == 0:
            for base, grp in ((37, rd_k(6)), (145, rd_k(7))):
                for i, g in enumerate(grp): fixed[base + 4 * i] = g
            fixed[74] = [waitlg("kr6"), barrier()]
            for i, g in enumerate(dma_v(2)): fixed[77 + 4 * i] = g
            B += weave(mf, None, None, fixed)
        else:
            fixed[2] = [waitlg("kr7"), barrier()]
            for i, g in enumerate(dma_v(3)): fixed[5 + 4 * i] = g
            fill = []
            k = 0
            for j in range(4):
                for qt in range(9): fill += max_tile(j, qt, k); k += 1
            W = weave(mf[:180], None, fill, {g: x for g, x in fixed.items() if g < 180}, 0.5, 0)
            assert not fill
            B += W
            out = []
            pend = []
            for i, m in enumerate(mf[180:]):
                out.append(m)
                if 180 + i in fixed: out += fixed[180 + i]
                if i >= 8:
                    ii = i - 8; out += max_tile(4 + ii % 4, ii // 4, k); k += 1
                    if ii % 4 == 3: out.append(dsw("ds_max_f32", vem, mx[ii // 4], 4 * (ii // 4), tag="mx"))
            for ii in range(28, 36):
                out += max_tile(4 + ii % 4, ii // 4, k); k += 1
                if ii % 4 == 3: out.append(dsw("ds_max_f32", vem, mx[ii // 4], 4 * (ii // 4), tag="mx"))
            B += out
    B += sync()
    B += [dsr("ds_read_b128", V(MX, 4), vem, 0), dsr("ds_read_b128", V(MX + 4, 4), vem, 16), dsr("ds_read_b32", V(MX + 8), vem, 32)]
    for qt in range(9): B.append(valu("v_mul_f32", mx[qt], sC, mx[qt]))
    B += exp_fill(0)
    B += sync("v0")
    B += g3_readsA(0) + g3_readsB(0)
    fill = exp_fill(1)
    for k in range(16):
        c, ks = k >> 1, k & 1
        mem = []
        pre = []
        if ks == 1:
            B += fill; fill = []
            tags = [f"v{c+1}"] if c < 7 else ["w0", "x0"]
            B += sync(*tags)
            if c + 2 < 8: fill = exp_fill(c + 2)
            if c + 4 < 8: mem += dma_v(c + 4)
            if c == 1: fill += max_init()
            if c == 3:
                B += [salu("s_add_u32", t3, sR, 1)] + set_next(t3)
            if c == 4: mem += dma_wq(0) + dma_wq(1)
            if c == 5: mem += dma_wq(2) + dma_wq(3)
            if c == 6: mem += dma_x(0) + dma_k(0); fill = sum_reduce()
            if c == 7: mem += dma_x(1) + dma_k(1); fill = sum_final()
            if c % 2 == 1:
                d = (RA - RB) if (c + 1) % 4 == 2 else (RB - RA)
                B += [valu("v_add_u32", vvr[j], hex(d & 0xffffffff), vvr[j]) for j in range(3)]
        mf = [mfma(Oacc(j, qt), g3A(k, j), g3B(k * 9 + qt), 0 if k == 0 else None) for qt in range(9) for j in range(3)]
        if k < 15: rB, rA = g3_readsB(k + 1), g3_readsA(k + 1)
        else: rB, rA = g1_readsB(0), g1_readsA(0)
        B += step27(mf, rB, rA, mem, fill, 3.2 if k > 0 else 6.0)
    B += fill
    tail = ["s_add_u32 s48, s48, 1", "s_cmp_lt_u32 s48, 4", "s_cbranch_scc1 L1_loop"]
    E = epilogue_fill() + [waitvm()]
    out = []
    bs = build_loop(P, B, E, "L1_loop", tail, out)
    out.append("L1_end:"); out.append("s_endpgm")
    sys.stderr.write("k1 body stats: %s\n" % bs)
    return out

def kd(name, vg, acc):
    return ['.amdhsa_kernel ' + name, f"  .amdhsa_next_free_vgpr {vg}", "  .amdhsa_next_free_sgpr 102", f"  .amdhsa_accum_offset {acc}",
            "  .amdhsa_group_segment_fixed_size 0", "  .amdhsa_kernarg_size 104", "  .amdhsa_user_sgpr_count 2",
            "  .amdhsa_user_sgpr_kernarg_segment_ptr 1", "  .amdhsa_system_sgpr_workgroup_id_x 1", ".end_amdhsa_kernel"]

def main(path, which):
    from gen2 import k2, LDS2
    hdr = open(f"cdna_kernels/{NAME}.s.ref").read().split("\n")
    hdr = [l for l in hdr if l.startswith(";") and "@launch" not in l and "Override" not in l and "grid=ceil" not in l]
    L = list(hdr)
    if "1" in which: L.append(f"; @launch kernel=attn_kernel grid=(256,1,1) block=(256,1,1) lds={LDS1}")
    if "2" in which: L.append(f"; @launch kernel=oproj_kernel grid=(240,1,1) block=(256,1,1) lds={LDS2}")
    L += ['.amdgcn_target "amdgcn-amd-amdhsa--gfx950"', ".text"]
    for nm, fn in (("attn_kernel", k1), ("oproj_kernel", k2)):
        L += [f".globl {nm}", ".p2align 8", f".type {nm},@function", f"{nm}:"] + fn()
    L += ['.section .rodata,"a"', ".p2align 6"] + kd("attn_kernel", 512, 256) + [".p2align 6"] + kd("oproj_kernel", 512, 256)
    open(path, "w").write("\n".join(L) + "\n")

if __name__ == "__main__":
    main(sys.argv[1], sys.argv[2] if len(sys.argv) > 2 else "12")
```

```python
import sys
from kgen import *
LDS2 = 147456
import os
OLDFL = os.environ.get("OLDFL", "")
WOFL = os.environ.get("WOFL", "")
EXP2 = os.environ.get("EXP2", "").split(",")

def k2():
    sW = S(3)
    WO, O, OUT = S(28, 4), S(32, 4), S(36, 4)
    sI = S(48); sHo = S(49); sHw = S(50)
    t0, t1, t2, t3, t4 = S(51), S(52), S(53), S(54), S(55)
    so = [S(56), S(57), S(58), S(59)]
    mW = S(62)
    sMT, sNT, sBR = S(63), S(64), S(65)
    vo4 = [V(1 + i) for i in range(6)]
    vo2 = [V(7 + i) for i in range(6)]
    vw = [V(13 + i) for i in range(4)]
    vr = [V(17 + i) for i in range(8)]
    vrw = [V(25 + i) for i in range(3)]
    vrr, vout = V(28), V(29)
    def acc(u, i): return A((u * 6 + i) * 4, 4)
    def fA(k, u): return A(192 + ((k & 1) * 8 + u) * 4, 4)
    def fB(k, i): return V(64 + ((k % 4) * 6 + i) * 4, 4)
    soi = [0]
    def nso():
        soi[0] = (soi[0] + 1) % 4
        return so[soi[0]]
    KS = [("A", 0), ("A", 1), ("B", 0), ("A", 2), ("A", 3), ("B", 2)]
    def hoff(k): return (k // 6) * 4
    def ld_B(k):
        typ, wp = KS[k % 6]; g = []
        if typ == "A":
            s_ = nso()
            g = [[vld(fB(k, i), vo4[i], O, s_, 0, OLDFL)] for i in range(6)]
            g[0] = [salu("s_add_u32", s_, sHo, hoff(k) * 55296 + wp * 13824)] + g[0]
        else:
            for hf in range(2):
                s_ = nso()
                h = [[vld(fB(k, i).sub(2 * hf, 2), vo2[i], O, s_, 0, OLDFL)] for i in range(6)]
                h[0] = [salu("s_add_u32", s_, sHo, hoff(k) * 55296 + (wp + hf) * 13824)] + h[0]
                g += h
        return g
    def dma_w(k):
        typ, wp = KS[k % 6]; g = []
        for hf in range(2):
            row = (48 * wp + 16 * hf) if typ == "A" else (48 * (wp + hf) + 32)
            s_ = nso()
            h = [[dma(vw[i], WO, s_, 1024 * i, WOFL, tag=f"w{k%12}")] for i in range(4)]
            h[0] = [salu("s_add_u32", "m0", mW, (k % 4) * 8192 + hf * 4096), salu("s_add_u32", s_, sHw, (hoff(k) * 192 + row) * 1280)] + h[0]
            g += h
        return g
    def rd_A(k):
        return [dsr("ds_read_b64_tr_b16", fA(k, u).sub(2 * hf, 2), vr[u], (k % 4) * 8192 + hf * 4096, tag=f"r{k%12}") for u in range(8) for hf in range(2)]
    def flat(groups): return [i for g in groups for i in g]

    P = []; e = P.append
    e(raw("s_cmp_ge_u32 s2, 240")); e(raw("s_cbranch_scc1 L2_end"))
    e(raw("s_load_dwordx2 s[4:5], s[0:1], 32")); e(raw("s_load_dwordx2 s[6:7], s[0:1], 72"))
    e(raw("s_load_dwordx2 s[8:9], s[0:1], 80")); e(raw("s_load_dwordx2 s[10:11], s[0:1], 96"))
    L, Iq, G, R_, C_, T1, T2, T3, T4 = [V(64 + i) for i in range(9)]
    e(valu("v_lshrrev_b32", T1, 6, V(0))); e(rfl(sW, T1))
    e(valu("v_and_b32", L, 63, V(0))); e(valu("v_and_b32", Iq, 15, L)); e(valu("v_lshrrev_b32", G, 4, L))
    e(valu("v_lshrrev_b32", R_, 2, Iq)); e(valu("v_and_b32", C_, 3, L))
    e(salu("s_and_b32", t0, S(2), 7)); e(salu("s_lshr_b32", t1, S(2), 3))
    e(salu("s_lshr_b32", sBR, t0, 2)); e(salu("s_and_b32", t0, t0, 3)); e(salu("s_mul_i32", t0, t0, 6))
    e(salu("s_mul_i32", t2, t1, 52)); e(salu("s_lshr_b32", t2, t2, 8))
    e(salu("s_add_u32", sMT, t0, t2)); e(salu("s_mul_i32", t2, t2, 5)); e(salu("s_sub_u32", sNT, t1, t2))
    e(salu("s_lshl_b32", mW, sW, 15))
    for i in range(6):
        e(salu("s_mul_i32", t0, sMT, 6)); e(salu("s_add_u32", t0, t0, i))
        e(salu("s_mul_i32", t1, t0, 57)); e(salu("s_lshr_b32", t1, t1, 9))
        e(salu("s_mul_i32", t2, t1, 9)); e(salu("s_sub_u32", t2, t0, t2))
        e(salu("s_mul_i32", t1, t1, 32 * 55296))
        e(salu("s_lshl_b32", t3, t2, 10)); e(salu("s_add_u32", t3, t3, t1)); e(valu("v_lshl_add_u32", vo4[i], L, 4, t3))
        e(salu("s_lshl_b32", t3, t2, 9)); e(salu("s_add_u32", t3, t3, t1)); e(salu("s_add_u32", t3, t3, 9216)); e(valu("v_lshl_add_u32", vo2[i], L, 3, t3))
    e(salu("s_lshl_b32", t0, sNT, 8))
    for i in range(4):
        e(valu("v_add_u32", T1, 4 * i, G))
        e(valu("v_and_b32", T2, 7, T1)); e(valu("v_lshlrev_b32", T2, 1, T2)); e(valu("v_xor_b32", T2, T2, Iq))
        e(valu("v_mul_u32_u24", T1, 1280, T1)); e(valu("v_lshl_add_u32", T1, T2, 4, T1)); e(valu("v_add_u32", T1, t0, T1))
        e(valu("v_subrev_u32", vw[i], 1024 * i, T1))
    e(valu("v_lshl_add_u32", T1, G, 2, R_)); e(valu("v_and_b32", T2, 7, T1))
    e(valu("v_lshlrev_b32", T1, 8, T1)); e(valu("v_lshl_add_u32", T1, C_, 3, T1)); e(valu("v_add_u32", T1, mW, T1))
    for u in range(8):
        e(salu("s_lshl_b32", t0, sW, 1)); e(salu("s_add_u32", t0, t0, u)); e(salu("s_and_b32", t0, t0, 7))
        e(valu("v_xor_b32", T3, t0, T2)); e(valu("v_lshl_add_u32", vr[u], T3, 5, T1))
    for d in range(1, 4):
        e(salu("s_add_u32", t0, sW, d)); e(salu("s_and_b32", t0, t0, 3)); e(salu("s_mul_i32", t0, t0, 36864)); e(salu("s_add_u32", t0, t0, (d - 1) * 12288))
        e(valu("v_lshl_add_u32", vrw[d - 1], L, 4, t0))
    e(salu("s_mul_i32", t0, sW, 36864)); e(valu("v_lshl_add_u32", vrr, L, 4, t0))
    e(salu("s_mul_i32", t0, sMT, 96 * 2560)); e(salu("s_mul_i32", t1, sBR, 1280)); e(salu("s_add_u32", t0, t0, t1))
    e(salu("s_lshl_b32", t1, sNT, 8)); e(salu("s_add_u32", t0, t0, t1)); e(salu("s_lshl_b32", t1, sW, 6)); e(salu("s_add_u32", t0, t0, t1))
    e(valu("v_mul_u32_u24", T1, 2560, Iq)); e(valu("v_and_b32", T2, 1, G)); e(valu("v_lshl_add_u32", T1, T2, 5, T1))
    e(valu("v_lshrrev_b32", T2, 1, G)); e(valu("v_lshl_add_u32", T1, T2, 4, T1)); e(valu("v_add_u32", vout, t0, T1))
    e(raw("s_waitcnt lgkmcnt(0)"))
    e(scmp("s_cmp_eq_u32", sBR, 0)); e(salu("s_cselect_b64", S(28, 2), S(4, 2), S(6, 2)))
    e(salu("s_mov_b32", S(30), 0 if "nowo" in EXP2 else 7864320)); e(salu("s_mov_b32", S(31), "0x20000"))
    e(salu("s_mul_i32", t0, sBR, 28311552)); e(salu("s_add_u32", S(32), S(10), t0)); e(salu("s_addc_u32", S(33), S(11), 0))
    e(salu("s_mov_b32", S(34), 0 if "noo" in EXP2 else 28311552)); e(salu("s_mov_b32", S(35), "0x20000"))
    e(salu("s_mov_b32", S(36), S(8))); e(salu("s_mov_b32", S(37), S(9))); e(salu("s_mov_b32", S(38), 5898240)); e(salu("s_mov_b32", S(39), "0x20000"))
    e(salu("s_mul_i32", sHo, sW, 55296)); e(salu("s_mul_i32", sHw, sW, 192 * 1280)); e(salu("s_mov_b32", sI, 0))
    for r in range(192): e(accwr(A(r), 0))
    P += flat(dma_w(0) + ld_B(0) + dma_w(1) + ld_B(1) + dma_w(2) + ld_B(2) + dma_w(3))
    P += [waitvm("w0")] + rd_A(0)

    B = []
    for k in range(12):
        mf = [mfma(acc(u, i), fA(k, u), fB(k, i)) for u in range(8) for i in range(6)]
        fixed = {}
        ra = rd_A(k + 1)
        for n, r in enumerate(ra): fixed[1 + 2 * n] = [r]
        fixed[1] = [waitvm(f"w{(k+1)%12}")] + fixed[1]
        dw = dma_w(k + 4); lb = ld_B(k + 3)
        dw[0] = [waitlg(f"r{k%12}")] + dw[0]
        pos = [g for g in range(48) if g not in fixed]
        for grp, g in zip(dw + lb, pos): fixed[g] = grp
        B += weave(mf, None, None, fixed)
    tail = ["s_add_u32 s49, s49, %d" % (8 * 55296), "s_add_u32 s50, s50, %d" % (8 * 192 * 1280),
            "s_add_u32 s48, s48, 1", "s_cmp_lt_u32 s48, 4", "s_cbranch_scc1 L2_loop"]
    E = [waitvm(), waitlg(), barrier()]
    for d in range(1, 4):
        for ul in range(2):
            for i in range(6):
                E.append(dsw("ds_write_b128", vrw[d - 1], acc(2 * d + ul, i), (ul * 6 + i) * 1024))
    for ul in range(2):
        for i in range(6):
            for r in range(4): E.append(accrd(V(64 + (ul * 6 + i) * 4 + r), acc(ul, i).sub(r)))
    E += [waitlg(), barrier()]
    for i in range(6):
        for ul in range(2):
            for d in range(3):
                E.append(dsr("ds_read_b128", V(112 + (((i & 1) * 2 + ul) * 3 + d) * 4, 4), vrr, d * 12288 + (ul * 6 + i) * 1024))
        pk = V(160 + 4 * (i & 1), 4)
        for ul in range(2):
            t = V(64 + (ul * 6 + i) * 4, 4)
            for d in range(3):
                s_ = V(112 + (((i & 1) * 2 + ul) * 3 + d) * 4, 4)
                for r in range(4): E.append(valu("v_add_f32", t.sub(r), t.sub(r), s_.sub(r)))
            E.append(valu("v_cvt_pk_bf16_f32", pk.sub(2 * ul), t.sub(0), t.sub(1)))
            E.append(valu("v_cvt_pk_bf16_f32", pk.sub(2 * ul + 1), t.sub(2), t.sub(3)))
        E.append(permswap("v_permlane16_swap_b32", pk.sub(0), pk.sub(2)))
        E.append(permswap("v_permlane16_swap_b32", pk.sub(1), pk.sub(3)))
        E.append(salu("s_mov_b32", t0, i * 16 * 2560))
        E.append(vst(pk, vout, OUT, t0, 0))
    E.append(waitvm())
    out = []
    bs = build_loop(P, B, E, "L2_loop", tail, out)
    out.append("L2_end:"); out.append("s_endpgm")
    sys.stderr.write("k2 body stats: %s\n" % bs)
    return out
```

```python
class Reg:
    __slots__ = ("k", "i", "n")
    def __init__(s, k, i, n=1):
        s.k, s.i, s.n = k, i, n
        assert i >= 0 and (k == "s" or i + n <= 256), (k, i, n)
    def __str__(s):
        return f"{s.k}{s.i}" if s.n == 1 else f"{s.k}[{s.i}:{s.i+s.n-1}]"
    __repr__ = __str__
    def regs(s):
        return [(s.k, s.i + j) for j in range(s.n)]
    def sub(s, off, n=1):
        assert off + n <= s.n
        return Reg(s.k, s.i + off, n)

def V(i, n=1): return Reg("v", i, n)
def A(i, n=1): return Reg("a", i, n)
def S(i, n=1): return Reg("s", i, n)
M0 = ("m0", 0)

def _rs(*ops):
    out = []
    for o in ops:
        if isinstance(o, Reg): out += o.regs()
        elif isinstance(o, Neg): out += o.r.regs()
    return out

class Neg:
    def __init__(s, r): s.r = r
    def __str__(s): return "-" + str(s.r)

class I:
    __slots__ = ("text", "kind", "rd", "wr", "tag", "tags", "srcc", "wide", "cmt")
    def __init__(s, text, kind, rd=(), wr=(), tag=None, tags=None, srcc=(), wide=False):
        s.text, s.kind, s.rd, s.wr, s.tag, s.tags, s.srcc, s.wide = text, kind, list(rd), list(wr), tag, tags, list(srcc), wide

def mfma(d, a, b, c=None):
    if c is None: c = d
    cs = c if isinstance(c, Reg) else 0
    return I(f"v_mfma_f32_16x16x32_bf16 {d}, {a}, {b}, {cs}", "mfma", rd=_rs(a, b), wr=_rs(d), srcc=_rs(c) if isinstance(c, Reg) else [])

def valu(op, d, *srcs, kind="valu", rmw=False):
    rd = _rs(*srcs) + (_rs(d) if rmw else [])
    return I(f"{op} {d}, " + ", ".join(str(x) for x in srcs), kind, rd=rd, wr=_rs(d))
def trans(op, d, *srcs): return valu(op, d, *srcs, kind="trans")
def permswap(op, a, b): return I(f"{op} {a}, {b}", "perm", rd=_rs(a, b), wr=_rs(a, b))
def accrd(d, a): return valu("v_accvgpr_read_b32", d, a)
def accwr(a, s): return valu("v_accvgpr_write_b32", a, s)
def rfl(d, s): return I(f"v_readfirstlane_b32 {d}, {s}", "rfl", rd=_rs(s), wr=_rs(d))

def salu(op, d, *srcs):
    wr = [M0] if d == "m0" else _rs(d)
    rd = _rs(*srcs) + ([M0] if "m0" in [str(x) for x in srcs] else [])
    return I(f"{op} {d}, " + ", ".join(str(x) for x in srcs), "salu", rd=rd, wr=wr)
def scmp(op, a, b): return I(f"{op} {a}, {b}", "salu", rd=_rs(a, b))
def raw(text, kind="raw"): return I(text, kind)

def _off(o):
    return f" offset:{o}" if o else ""
def dsr(op, d, addr, off=0, tag=None):
    assert 0 <= off < 65536, off
    return I(f"{op} {d}, {addr}{_off(off)}", "dsr", rd=_rs(addr), wr=_rs(d), tag=tag)
def dsw(op, addr, data, off=0, tag=None):
    assert 0 <= off < 65536, off
    return I(f"{op} {addr}, {data}{_off(off)}", "dsw", rd=_rs(addr, data), tag=tag, wide=data.n >= 3)
def dma(voff, srd, soff, off=0, fl="", tag=None):
    assert 0 <= off < 4096, off
    fl = (" " + fl) if fl else ""
    return I(f"buffer_load_dwordx4 {voff}, {srd}, {soff} offen{_off(off)}{fl} lds", "dma", rd=_rs(voff, srd, soff) + [M0], tag=tag)
def vld(d, voff, srd, soff, off=0, fl="", tag=None):
    assert 0 <= off < 4096, off
    fl = (" " + fl) if fl else ""
    op = {1: "dword", 2: "dwordx2", 4: "dwordx4"}[d.n]
    return I(f"buffer_load_{op} {d}, {voff}, {srd}, {soff} offen{_off(off)}{fl}", "vld", rd=_rs(voff, srd, soff), wr=_rs(d), tag=tag)
def vst(data, voff, srd, soff, off=0, fl="", tag=None):
    assert 0 <= off < 4096, off
    fl = (" " + fl) if fl else ""
    op = {1: "dword", 2: "dwordx2", 4: "dwordx4"}[data.n]
    i = I(f"buffer_store_{op} {data}, {voff}, {srd}, {soff} offen{_off(off)}{fl}", "vst", rd=_rs(data, voff, srd, soff), tag=tag, wide=data.n >= 3)
    return i
def waitvm(*tags): return I("", "waitvm", tags=list(tags))
def waitlg(*tags): return I("", "waitlg", tags=list(tags))
def barrier(): return I("s_barrier", "bar")
def nop(n): return I(f"s_nop {n}", "nop", tag=n)

VALU_KINDS = ("valu", "trans", "perm", "rfl")
MEM_KINDS = ("dsr", "dsw", "dma", "vld", "vst")

class State:
    def __init__(s):
        s.lg = []
        s.vm = []
    def copy(s):
        t = State(); t.lg = list(s.lg); t.vm = list(s.vm); return t
    def sig(s):
        return ([t for _, t in s.lg], [t for _, t in s.vm])

def compute_waits(insts, st, forced):
    st = st.copy()
    for idx, ins in enumerate(insts):
        nv = nl = None
        touched = set(ins.rd) | set(ins.wr) | set(ins.srcc)
        if ins.kind == "waitvm":
            if not ins.tags: nv = 0 if st.vm else None
            else:
                for j, (_, t) in enumerate(st.vm):
                    if t in ins.tags: nv = len(st.vm) - 1 - j
        elif ins.kind == "waitlg":
            if not ins.tags: nl = 0 if st.lg else None
            else:
                for j, (_, t) in enumerate(st.lg):
                    if t in ins.tags: nl = len(st.lg) - 1 - j
        elif touched:
            for j, (r, _) in enumerate(st.vm):
                if r & touched: nv = len(st.vm) - 1 - j
            for j, (r, _) in enumerate(st.lg):
                if r & touched: nl = len(st.lg) - 1 - j
        if nl is not None and nl > 15: nl = 15
        if nv is not None and nv > 63: nv = 63
        f = forced.get(idx)
        if f:
            if f[0] is not None: nv = f[0] if nv is None else min(nv, f[0])
            if f[1] is not None: nl = f[1] if nl is None else min(nl, f[1])
        if nv is not None or nl is not None:
            forced[idx] = [nv, nl]
            if nv is not None and len(st.vm) > nv: st.vm = st.vm[len(st.vm) - nv:]
            if nl is not None and len(st.lg) > nl: st.lg = st.lg[len(st.lg) - nl:]
        if ins.kind in ("dsr", "dsw"): st.lg.append((set(ins.wr), ins.tag))
        elif ins.kind in ("dma", "vld", "vst"): st.vm.append((set(ins.wr), ins.tag))
    return st

def emit(insts, forced, out, stats=None):
    pos = 0
    lastw = {}
    lastc = {}
    lastst = {}
    pend = [None, None]
    for idx, ins in enumerate(insts):
        f = forced.get(idx)
        if f:
            for k in range(2):
                if f[k] is not None: pend[k] = f[k] if pend[k] is None else min(pend[k], f[k])
        if ins.kind in ("waitvm", "waitlg", "touch"):
            continue
        if pend[0] is not None or pend[1] is not None:
            w = []
            if pend[0] is not None: w.append(f"vmcnt({pend[0]})")
            if pend[1] is not None: w.append(f"lgkmcnt({pend[1]})")
            out.append("s_waitcnt " + " ".join(w)); pos += 1
            pend = [None, None]
            if stats is not None: stats["wait"] = stats.get("wait", 0) + 1
        need = 0
        def req(p, n):
            nonlocal need
            d = pos - p - 1
            if n - d > need: need = n - d
        k = ins.kind
        for r in list(ins.rd) + list(ins.srcc):
            lw = lastw.get(r)
            if lw is None: continue
            p, pk, pd = lw
            if pk == "mfma":
                if k == "mfma" and r in ins.srcc and r not in ins.rd:
                    if pd != tuple(ins.srcc): req(p, 6)
                else: req(p, 8)
            elif pk in VALU_KINDS:
                if r[0] == "s":
                    if k in ("dma", "vld", "vst"): req(p, 5)
                    elif k in VALU_KINDS: req(p, 2)
                    else: req(p, 1)
                else:
                    if k == "mfma": req(p, 2)
                    elif k == "perm": req(p, 2)
                    elif k == "rfl": req(p, 1)
                    if pk == "trans" and k != "trans": req(p, 1)
            elif pk == "salu" and r == M0 and k == "dma": req(p, 1)
        for r in ins.wr:
            lw = lastw.get(r)
            if lw is not None and lw[1] == "mfma" and k != "mfma": req(lw[0], 8)
            if lw is not None and lw[1] == "mfma" and k == "mfma" and lw[2] != tuple(ins.wr): req(lw[0], 6)
            if r in lastc and k != "mfma": req(lastc[r], 3)
            if r in lastst: req(lastst[r], 2)
        while need > 0:
            n = min(need, 16)
            out.append(f"s_nop {n-1}"); pos += n; need -= n
            if stats is not None: stats["nop"] = stats.get("nop", 0) + n
        out.append(ins.text)
        if stats is not None: stats[k] = stats.get(k, 0) + 1
        for r in ins.wr: lastw[r] = (pos, k, tuple(ins.wr))
        for r in ins.srcc: lastc[r] = pos
        if ins.wide:
            for r in ins.rd: lastst[r] = pos
        pos += (ins.tag + 1) if k == "nop" else (0 if k == "label" else 1)
    if pend[0] is not None or pend[1] is not None:
        w = []
        if pend[0] is not None: w.append(f"vmcnt({pend[0]})")
        if pend[1] is not None: w.append(f"lgkmcnt({pend[1]})")
        out.append("s_waitcnt " + " ".join(w))

def build_loop(pro, body, epi, label, loop_tail, out, stats=None):
    body = hoist_waits(body)
    fp = {}
    sp = compute_waits(pro, State(), fp)
    fb = {}
    for _ in range(6):
        before = repr(sorted(fb.items()))
        e1 = compute_waits(body, sp, fb)
        e2 = compute_waits(body, e1, fb)
        e3 = compute_waits(body, e2, fb)
        if repr(sorted(fb.items())) == before: break
    else:
        raise RuntimeError("waits did not converge")
    fe = {}
    compute_waits(epi, e1, fe); compute_waits(epi, e2, fe); compute_waits(epi, e1, fe)
    emit(pro, fp, out, stats)
    out.append("s_nop 7")
    out.append(".p2align 3")
    out.append(f"{label}:")
    bs = {}
    emit(body, fb, out, bs)
    out.append("s_nop 7")
    out.extend(loop_tail)
    emit(epi, fe, out, stats)
    return bs

def is_mem(i): return i.kind in MEM_KINDS

def weave(mf, mem=None, fill=None, fixed=None, rate=1.0, start=0, drain=False):
    out = []
    mem = list(mem or []); fixed = fixed or {}
    credit = 0.0
    pend = []
    lastw = {}
    for g, m in enumerate(mf):
        for r in m.wr: lastw[r] = g
    cur = [0]
    def blocked(f):
        w = set(f.wr); r = set(f.rd)
        for x in r:
            if lastw.get(x, -99) + 3 > cur[0]: return True
        for p in pend:
            if w & (set(p.rd) | set(p.wr)) or r & set(p.wr): return True
        return False
    for g, m in enumerate(mf):
        out.append(m); cur[0] = g
        used = False
        if g in fixed:
            out.extend(fixed[g]); used = any(is_mem(x) for x in fixed[g])
        if not used and pend:
            out.append(pend.pop(0)); used = True
        elif not used and mem and g >= start:
            out.extend(mem.pop(0)); used = True
        elif used and len(pend) >= 2:
            out.append(pend.pop(0))
        if fill is not None:
            credit = min(credit, 0) + (rate - 1 if used and rate >= 2 else rate) if rate >= 1 else credit + rate
            while fill and credit > 0:
                f = fill[0]
                if is_mem(f):
                    pend.append(fill.pop(0)); continue
                if blocked(f): break
                out.append(fill.pop(0))
                credit -= cost(f)
    out.extend(pend)
    for grp in mem: out.extend(grp)
    return out

def hoist_waits(insts):
    idx = [i for i, x in enumerate(insts) if x.kind == "mfma"]
    ins_at = {}
    for a, b in zip(idx, idx[1:]):
        if b - a > 12: continue
        between = insts[a + 1:b]
        if any(x.kind in ("bar", "raw") for x in between): continue
        rd = set(insts[b].rd)
        for x in between:
            if x.kind in VALU_KINDS: rd |= set(r for r in x.rd)
        w = set()
        for x in between: w |= set(x.wr) if is_mem(x) else set()
        ins_at[a + 1] = I("", "touch", rd=[r for r in rd if r not in w])
    out = []
    for i, x in enumerate(insts):
        if i in ins_at: out.append(ins_at[i])
        out.append(x)
    return out

def cost(i):
    if i.kind == "trans": return 2
    if i.kind in ("waitvm", "waitlg"): return 0
    return 1


class Stamps:
    def __init__(s, on, sR, it, wsreg):
        s.on, s.sR, s.it, s.ws, s.names = on, sR, it, wsreg, []
    def __call__(s, name, always=False):
        if not s.on: return []
        i = len(s.names); s.names.append(name); assert i < 26
        L = [waitlg(), raw("s_memtime s[98:99]"), raw("s_waitcnt lgkmcnt(0)")]
        if always: L += [raw(f"s_mov_b32 s{72+i}, s98")]
        else: L += [raw(f"s_cmp_eq_u32 {s.sR}, {s.it}"), raw(f"s_cselect_b32 s{72+i}, s98, s{72+i}")]
        return L
    def dump(s, sW):
        if not s.on: return []
        L = [raw("s_nop 4"), raw("v_mov_b32 v1, 0")]
        for i in range(len(s.names)): L.append(raw(f"v_writelane_b32 v1, s{72+i}, {i}"))
        L += [raw(f"s_add_u32 s28, s{s.ws}, 0x8000000"), raw(f"s_addc_u32 s29, s{s.ws+1}, 0"), raw("s_mov_b32 s30, 0x100000"), raw("s_mov_b32 s31, 0x20000"),
              raw("s_lshl_b32 s51, s2, 2"), raw(f"s_add_u32 s51, s51, {sW}"), raw("s_lshl_b32 s51, s51, 8"),
              raw("v_and_b32 v2, 63, v0"), raw("v_lshlrev_b32 v2, 2, v2"), raw("s_nop 4"),
              raw("buffer_store_dword v1, v2, s[28:31], s51 offen"), raw("s_waitcnt vmcnt(0)")]
        import sys; sys.stderr.write("STAMPS " + ",".join(s.names) + "\n")
        open("stamps.txt", "a").write(",".join(s.names) + "\n")
        return L
```

```python
import sys, struct, math
sys.path.insert(0, "tools")
from kgen import *

NAME = "concat_heads__mha_block_cached__gqa_block_cached__near_ridge"
def f32bits(x): return struct.unpack("<I", struct.pack("<f", x))[0]

QP = 0; QS = 18432
RA = 55296; KB = 24832
RB = 104960
EXM = 154112; EXS = 154880
LDS1 = 157952
VSLOT = [RB, RB + 24576, RA, RA + KB]

import os
KVFL = os.environ.get("KVFL", "nt")
WQFL = os.environ.get("WQFL", "")
XFL = os.environ.get("XFL", "")
OSTFL = os.environ.get("OSTFL", "nt")
EXP = os.environ.get("EXP", "").split(",")

import os
STAMP = os.environ.get("STAMP", "")
def k1():
    st = Stamps(STAMP.startswith("1"), "s48", int(STAMP[2:] or 2) if STAMP.startswith("1") else 0, 26)
    sW = S(3)
    X, WQ, K, Vd, O = S(28, 4), S(32, 4), S(36, 4), S(40, 4), S(44, 4)
    sR, sH, sG = S(48), S(49), S(50)
    t0, t1, t2, t3 = S(51), S(52), S(53), S(54)
    so = [S(56), S(57), S(58), S(59)]
    mX, mWQ, mK, mV = S(62), S(63), S(64), S(65)
    sC, s4k, s8k = S(66), S(67), S(68)
    rot = [S(i) for i in (12, 13, 22, 23, 24, 25, 55, 60, 61, 69)]
    vx = [V(1 + i) for i in range(5)]
    vw = [V(6 + i) for i in range(3)]
    vk = [V(9 + i) for i in range(3)]
    vv = [V(12 + i) for i in range(3)]
    vxr = [V(15), V(16)]
    vwr = [V(17 + i) for i in range(3)]
    vvr = [V(20 + i) for i in range(3)]
    vkr, vqw, vlin, vpw, vem, ves, vesr, vso4, vso2 = [V(23 + i) for i in range(9)]
    MX = 32
    SM = 44
    TP = 56
    mx = [V(MX + i) for i in range(12)]
    sm = [V(SM + i) for i in range(12)]
    tp = [V(TP + i) for i in range(8)]
    def St(j, qt):
        if j < 4: return V(64 + (j * 9 + qt) * 4, 4)
        if j < 6: return A(((j - 4) * 9 + qt) * 4, 4)
        if j == 6: return A(72 + qt * 4, 4) if qt < 6 else V(208 + (qt - 6) * 4, 4)
        return V(220 + qt * 4, 4)
    KR = [24, 48, 72, 0, 96, 120, 144, 168]
    def Kf(j, T): return A(KR[j] + 4 * T, 4)
    def Qacc(j, qt): return V(64 + (j * 9 + qt) * 4, 4)
    def Oacc(j, qt): return A(148 + (j * 9 + qt) * 4, 4)
    def g1A(s, j): return V(172 + ((s & 1) * 3 + j) * 4, 4)
    def g1B(n): return V(196 + (n % 15) * 4, 4)
    def g3A(s, j): return A(((s & 1) * 3 + j) * 4, 4)
    def g3B(n): return A(96 + (n % 13) * 4, 4)
    def g2B(n): return A(192 + (n % 16) * 4, 4)

    soi = [0]
    def nso():
        soi[0] = (soi[0] + 1) % 4
        return so[soi[0]]

    def dma_x(p):
        slot = (p + 2) % 3; s_ = rot[p]
        g = [[salu("s_add_u32", "m0", mX, QP + slot * QS),
              raw("s_mov_b32 exec_hi, 0", "salu"), dma(vx[0], X, s_, 0, XFL, tag=f"x{p}"), raw("s_mov_b32 exec_hi, -1", "salu")]]
        g += [[dma(vx[1 + i], X, s_, 512 + 1024 * i, XFL, tag=f"x{p}")] for i in range(4)]
        return g
    def dma_wq(s):
        s_ = nso()
        g = [[dma(vw[i], WQ, s_, 1024 * i, WQFL, tag=f"w{s}")] for i in range(3)]
        g[0] = [salu("s_add_u32", "m0", mWQ, (s % 4) * 12288), salu("s_mul_i32", s_, rot[s >> 1], 6144)] + \
               ([salu("s_add_u32", s_, s_, 32 * 12288)] if s & 1 else []) + g[0]
        return g
    def dma_k(j):
        kb = (j + 4) % 8; g = []
        for hf in range(2):
            s_ = nso()
            h = [[dma(vk[i], K, s_, 1024 * i, KVFL, tag=f"k{j}")] for i in range(3)]
            h[0] = [salu("s_add_u32", "m0", mK, (j % 2) * KB + hf * 3136), salu("s_mov_b32", s_, kb * 24576 + hf * 3072)] + h[0]
            g += h
        return g
    def dma_v(c):
        g = []
        for hf in range(2):
            s_ = nso()
            h = [[dma(vv[i], Vd, s_, 1024 * i, KVFL, tag=f"v{c}")] for i in range(3)]
            h[0] = [salu("s_add_u32", "m0", mV, VSLOT[c % 4] + hf * 3072), salu("s_mov_b32", s_, c * 24576 + hf * 3072)] + h[0]
            g += h
        return g
    def rd_k(j):
        g = [[dsr("ds_read_b128", Kf(j, T), vkr, (j % 2) * KB + T * 64, tag=f"kr{j}")] for T in range(6)]
        g[0] = [waitvm(f"k{j}")] + g[0]
        return g
    def flat(groups): return [i for g in groups for i in g]

    def g1_readsB(s):
        p = s >> 1; slot = (p + 2) % 3
        return [dsr("ds_read_b128", g1B(s * 9 + qt), vxr[s & 1], QP + slot * QS + qt * 2048) for qt in range(9)]
    def g1_readsA(s):
        return [dsr("ds_read_b64_tr_b16", g1A(s, j).sub(2 * hf, 2), vwr[j], (s % 4) * 12288 + hf * 1536) for j in range(3) for hf in range(2)]
    def g3_readsB(k):
        c, ks = k >> 1, k & 1
        return [dsr("ds_read_b128", g3B(k * 9 + qt), vlin, QP + (c % 3) * QS + (ks * 9 + qt) * 1024) for qt in range(9)]
    def g3_readsA(k):
        c, ks = k >> 1, k & 1
        off = (VSLOT[c % 4] - (RB if c % 4 < 2 else RA)) + ks * 12288
        return [dsr("ds_read_b64_tr_b16", g3A(k, j).sub(2 * hf, 2), vvr[j], off + hf * 6144) for j in range(3) for hf in range(2)]

    def step27(mf, rB, rA, mem, fill, rate):
        fixed = {}
        mem = list(mem)
        vm = [g for g in mem if any(x.kind == "dma" for x in g)]
        ds = [g for g in mem if not any(x.kind == "dma" for x in g)]
        n = len(vm)
        pos = [int(1 + i * 26.0 / n) for i in range(n)] if n else []
        for g, grp in zip(pos, vm): fixed[g] = grp
        order = [rB[0], rA[0], rB[1], rA[1], rB[2], rA[2], rB[3], rA[3], rB[4], rA[4], rB[5], rA[5], rB[6], rB[7], rB[8]]
        free = [g for g in range(27) if g not in fixed]
        seq = [[r] for r in order] + ds
        while len(seq) > len(free): seq = merge_once(seq, len(seq) - len(free))
        for g, grp in zip(free, seq): fixed[g] = grp
        for g, grp in fixed.items():
            for x in grp:
                if x in rB: assert g >= 3 * (rB.index(x) - 4) + 2, (g, rB.index(x))
        return weave(mf, None, fill, fixed, rate)
    def merge_once(mem, k):
        out = []; i = 0
        while i < len(mem):
            if k > 0 and i + 1 < len(mem):
                out.append(mem[i] + mem[i + 1]); i += 2; k -= 1
            else:
                out.append(mem[i]); i += 1
        return out

    def set_next(rn):
        L = [scmp("s_cmp_lt_u32", rn, 2),
             salu("s_cselect_b64", S(28, 2), S(4, 2), S(14, 2)),
             salu("s_cselect_b64", S(32, 2), S(10, 2), S(20, 2)),
             salu("s_cselect_b64", S(36, 2), S(6, 2), S(16, 2)),
             salu("s_and_b32", t0, rn, 1), salu("s_lshl_b32", t0, t0, 3), salu("s_add_u32", t0, t0, sG),
             salu("s_mul_i32", t1, t0, 184320),
             salu("s_add_u32", S(28), S(28), t1), salu("s_addc_u32", S(29), S(29), 0),
             salu("s_mul_i32", t1, sH, 384),
             salu("s_add_u32", S(32), S(32), t1), salu("s_addc_u32", S(33), S(33), 0),
             salu("s_sub_u32", t2, 7864320, t1),
             salu("s_lshl_b32", t0, t0, 5), salu("s_add_u32", t0, t0, sH), salu("s_mul_i32", t1, t0, 196608),
             salu("s_add_u32", S(36), S(36), t1), salu("s_addc_u32", S(37), S(37), 0),
             scmp("s_cmp_lt_u32", rn, 4),
             salu("s_cselect_b32", S(30), 184320, 0),
             salu("s_cselect_b32", S(34), t2, 0),
             salu("s_cselect_b32", S(38), 196608, 0)]
        if "nok" in EXP: L.append(salu("s_mov_b32", S(38), 0))
        if "nox" in EXP: L.append(salu("s_mov_b32", S(30), 0))
        if "nowq" in EXP: L.append(salu("s_mov_b32", S(34), 0))
        return L
    def set_v():
        return [scmp("s_cmp_lt_u32", sR, 2),
                salu("s_cselect_b64", S(40, 2), S(8, 2), S(18, 2)),
                salu("s_and_b32", t0, sR, 1), salu("s_lshl_b32", t0, t0, 3), salu("s_add_u32", t0, t0, sG),
                salu("s_lshl_b32", t0, t0, 5), salu("s_add_u32", t0, t0, sH), salu("s_mul_i32", t1, t0, 196608),
                salu("s_add_u32", S(40), S(40), t1), salu("s_addc_u32", S(41), S(41), 0)]
    def set_o():
        return [salu("s_lshl_b32", t0, sR, 3), salu("s_add_u32", t0, t0, sG), salu("s_lshl_b32", t0, t0, 5),
                salu("s_add_u32", t0, t0, sH), salu("s_mul_i32", t1, t0, 55296),
                salu("s_add_u32", S(44), S(26), t1), salu("s_addc_u32", S(45), S(27), 0),
                salu("s_mov_b32", S(46), 0 if "nost" in EXP else 55296)]

    def epilogue_fill():
        F = []
        sets = [(V(TP, 4), V(TP + 4, 4)), (V(MX, 4), V(MX + 4, 4))]
        for qt in range(9):
            pk, tm = sets[qt & 1]
            for j in range(3):
                for r in range(4): F.append(accrd(tm.sub(r), Oacc(j, qt).sub(r)))
                for r in range(4): F.append(valu("v_mul_f32", tm.sub(r), tm.sub(r), sm[qt]))
                if j < 2:
                    F.append(valu("v_cvt_pk_bf16_f32", pk.sub(2 * j), tm.sub(0), tm.sub(1)))
                    F.append(valu("v_cvt_pk_bf16_f32", pk.sub(2 * j + 1), tm.sub(2), tm.sub(3)))
                    if j == 1:
                        sof = [0, s4k, s8k][qt // 4]
                        F.append(vst(pk, vso4, O, sof, (qt % 4) * 1024, OSTFL, tag="ost"))
                else:
                    p2 = V(MX + 8 + 2 * (qt & 1), 2)
                    F.append(valu("v_cvt_pk_bf16_f32", p2.sub(0), tm.sub(0), tm.sub(1)))
                    F.append(valu("v_cvt_pk_bf16_f32", p2.sub(1), tm.sub(2), tm.sub(3)))
                    F.append(vst(p2, vso2, O, [0, s4k][qt // 8], (qt % 8) * 512, OSTFL, tag="ost"))
        return F
    def exp_fill(c):
        j = (c + 4) % 8; F = []
        for qt in range(9):
            t = St(j, qt)
            if t.k == "a":
                tm = V(TP + 4 * (qt & 1), 4)
                for r in range(4): F.append(accrd(tm.sub(r), t.sub(r)))
                t = tm
            for r in range(4): F.append(valu("v_fma_f32", t.sub(r), t.sub(r), sC, Neg(mx[qt])))
            for r in range(4): F.append(trans("v_exp_f32", t.sub(r), t.sub(r)))
            if c == 0:
                F.append(valu("v_add_f32", sm[qt], t.sub(0), t.sub(1)))
                rs = [2, 3]
            else: rs = [0, 1, 2, 3]
            for r in rs: F.append(valu("v_add_f32", sm[qt], sm[qt], t.sub(r)))
            F.append(valu("v_cvt_pk_bf16_f32", t.sub(0), t.sub(0), t.sub(1)))
            F.append(valu("v_cvt_pk_bf16_f32", t.sub(1), t.sub(2), t.sub(3)))
            F.append(dsw("ds_write_b64", vpw, t.sub(0, 2), QP + (c % 3) * QS + qt * 1024, tag=f"p{c}"))
        return F
    def max_tile(j, qt, k):
        t = St(j, qt); F = []
        if t.k == "a":
            tm = V(TP + 4 * (k & 1), 4)
            for r in range(4): F.append(accrd(tm.sub(r), t.sub(r)))
            t = tm
        if j == 0: F.append(valu("v_max_f32", mx[qt], t.sub(0), t.sub(1)))
        else: F.append(valu("v_max3_f32", mx[qt], mx[qt], t.sub(0), t.sub(1)))
        F.append(valu("v_max3_f32", mx[qt], mx[qt], t.sub(2), t.sub(3)))
        return F
    def sum_reduce():
        F = []
        for k in range(3):
            a, b, c_, d = sm[4 * k], sm[4 * k + 2], sm[4 * k + 1], sm[4 * k + 3]
            F.append(permswap("v_permlane32_swap_b32", a, b)); F.append(permswap("v_permlane32_swap_b32", c_, d))
            F.append(valu("v_add_f32", a, a, b)); F.append(valu("v_add_f32", c_, c_, d))
            F.append(permswap("v_permlane16_swap_b32", a, c_))
            F.append(valu("v_add_f32", a, a, c_))
            F.append(dsw("ds_write_b32", ves, a, k * 1024, tag="sumw"))
        return F
    def sum_final():
        F = []
        for qt in range(9): F.append(dsr("ds_read_b128", V(64 + 4 * qt, 4), vesr, qt * 256))
        for qt in range(9):
            t = V(64 + 4 * qt, 4)
            F.append(valu("v_add_f32", t.sub(0), t.sub(0), t.sub(1)))
            F.append(valu("v_add_f32", t.sub(2), t.sub(2), t.sub(3)))
            F.append(valu("v_add_f32", t.sub(0), t.sub(0), t.sub(2)))
            F.append(trans("v_rcp_f32", sm[qt], t.sub(0)))
        return F
    def max_init():
        F = [valu("v_mov_b32", tp[r], "0xff800000") for r in range(4)]
        F += [dsw("ds_write_b128", vem, V(TP, 4), 16 * k, tag="mi") for k in range(3)]
        return F
    def sync(*vmtags):
        return ([waitvm(*vmtags)] if vmtags else []) + [waitlg(), barrier()]

    P = []
    e = P.append
    e(raw("s_cmp_ge_u32 s2, 256")); e(raw("s_cbranch_scc1 L1_end"))
    e(raw("s_load_dwordx16 s[4:19], s[0:1], 0")); e(raw("s_load_dwordx4 s[20:23], s[0:1], 64"))
    e(raw("s_load_dwordx2 s[26:27], s[0:1], 96"))
    L, Iq, G, R_, C_, T1, T2, T3, T4 = [V(64 + i) for i in range(9)]
    e(valu("v_lshrrev_b32", T1, 6, V(0))); e(rfl(sW, T1))
    e(valu("v_and_b32", L, 63, V(0))); e(valu("v_and_b32", Iq, 15, L)); e(valu("v_lshrrev_b32", G, 4, L))
    e(valu("v_lshrrev_b32", R_, 2, Iq)); e(valu("v_and_b32", C_, 3, L))
    e(salu("s_and_b32", t0, S(2), 7)); e(salu("s_lshr_b32", t1, S(2), 3))
    e(salu("s_and_b32", t2, t1, 3)); e(salu("s_lshl_b32", t0, t0, 2)); e(salu("s_add_u32", sH, t0, t2))
    e(salu("s_lshr_b32", sG, t1, 2)); e(salu("s_mov_b32", sR, 0))
    e(salu("s_mul_i32", mX, sW, 4608)); e(salu("s_mul_i32", mWQ, sW, 3072)); e(salu("s_add_u32", mWQ, mWQ, RB))
    e(salu("s_mul_i32", mK, sW, 6208)); e(salu("s_add_u32", mK, mK, RA)); e(salu("s_mul_i32", mV, sW, 6144))
    e(salu("s_mov_b32", sC, hex(f32bits(192 ** -0.5 * math.log2(math.e))))); e(salu("s_mov_b32", s4k, 4096)); e(salu("s_mov_b32", s8k, 8192))
    for r in (31, 35, 39, 43, 47): e(salu("s_mov_b32", S(r), "0x20000"))
    e(salu("s_mov_b32", S(42), 0 if "nov" in EXP else 196608)); e(salu("s_mov_b32", S(46), 0))
    e(salu("s_mul_i32", t0, sW, 36))
    for i in range(5):
        e(valu("v_lshrrev_b32", T1, 3, L)); e(valu("v_add_u32", T1, t0, T1))
        if i: e(valu("v_add_u32", T1, 4 + 8 * (i - 1), T1))
        e(valu("v_bfe_u32", T2, T1, 1, 3)); e(valu("v_and_b32", T3, 7, L)); e(valu("v_xor_b32", T2, T2, T3))
        e(valu("v_mul_u32_u24", T1, 1280, T1)); e(valu("v_lshl_add_u32", vx[i], T2, 4, T1))
        if i: e(valu("v_subrev_u32", vx[i], 512 + 1024 * (i - 1), vx[i]))
    e(salu("s_and_b32", t1, sW, 1)); e(salu("s_lshl_b32", t1, t1, 1))
    e(salu("s_mul_i32", t2, sW, 8 * 12288)); e(salu("s_mul_i32", t3, sW, 6144))
    for i in range(3):
        e(valu("v_add_u32", T1, 64 * i, L)); e(valu("v_mul_u32_u24", T2, 2731, T1)); e(valu("v_lshrrev_b32", T2, 16, T2))
        e(valu("v_mul_u32_u24", T3, 24, T2)); e(valu("v_sub_u32", T1, T1, T3))
        e(valu("v_bfe_u32", T3, T2, 1, 1)); e(valu("v_or_b32", T3, t1, T3)); e(valu("v_lshlrev_b32", T3, 1, T3)); e(valu("v_xor_b32", T3, T3, T1))
        e(valu("v_mul_u32_u24", T4, 12288, T2)); e(valu("v_lshl_add_u32", T4, T3, 4, T4)); e(valu("v_add_u32", T4, t2, T4))
        e(valu("v_subrev_u32", vw[i], 1024 * i, T4))
        e(valu("v_bfe_u32", T3, T2, 1, 2)); e(valu("v_xor_b32", T3, T3, T1))
        e(valu("v_mul_u32_u24", T4, 384, T2)); e(valu("v_add_u32", T4, t3, T4)); e(valu("v_subrev_u32", T4, 1024 * i, T4))
        e(valu("v_lshl_add_u32", vk[i], T3, 4, T4))
        e(valu("v_bfe_u32", T3, T2, 1, 2)); e(valu("v_lshlrev_b32", T3, 1, T3)); e(valu("v_xor_b32", T3, T3, T1))
        e(valu("v_lshl_add_u32", vv[i], T3, 4, T4))
    e(valu("v_bfe_u32", T1, Iq, 1, 3)); e(valu("v_xor_b32", T1, T1, G)); e(valu("v_lshlrev_b32", T1, 4, T1))
    e(valu("v_lshl_add_u32", vxr[0], Iq, 7, T1)); e(valu("v_xor_b32", vxr[1], 64, vxr[0]))
    e(salu("s_mul_i32", t0, sW, 3))
    for j in range(3):
        e(salu("s_add_u32", t1, t0, j))
        e(valu("v_lshrrev_b32", T1, 1, R_)); e(valu("v_and_b32", T2, 1, G)); e(valu("v_lshl_add_u32", T1, T2, 1, T1))
        e(valu("v_xor_b32", T1, t1, T1)); e(valu("v_lshlrev_b32", T1, 5, T1)); e(valu("v_lshl_add_u32", T1, C_, 3, T1))
        e(valu("v_lshl_add_u32", T2, G, 3, R_)); e(valu("v_mul_u32_u24", T2, 384, T2)); e(valu("v_add_u32", T2, T1, T2))
        e(valu("v_add_u32", vwr[j], RB, T2))
        e(valu("v_lshl_add_u32", T2, G, 2, R_)); e(valu("v_mul_u32_u24", T2, 384, T2)); e(valu("v_add_u32", T2, T1, T2))
        e(valu("v_add_u32", vvr[j], RB, T2))
    e(valu("v_bfe_u32", T1, Iq, 1, 2)); e(valu("v_xor_b32", T1, T1, G)); e(valu("v_lshlrev_b32", T1, 4, T1))
    e(valu("v_mul_u32_u24", T2, 384, Iq)); e(valu("v_add_u32", T1, T1, T2)); e(valu("v_lshrrev_b32", T2, 3, Iq))
    e(valu("v_lshl_add_u32", T1, T2, 6, T1)); e(valu("v_add_u32", vkr, mK, T1))
    e(salu("s_mul_i32", t1, sW, 1536)); e(valu("v_lshrrev_b32", T1, 1, G)); e(valu("v_lshlrev_b32", T1, 8, T1))
    e(valu("v_lshl_add_u32", T1, Iq, 4, T1)); e(valu("v_and_b32", T2, 1, G)); e(valu("v_lshl_add_u32", T1, T2, 3, T1))
    e(valu("v_add_u32", vqw, t1, T1))
    e(valu("v_lshlrev_b32", vlin, 4, L))
    e(salu("s_lshr_b32", t1, sW, 1)); e(salu("s_mul_i32", t1, t1, 9216)); e(salu("s_and_b32", t2, sW, 1)); e(salu("s_lshl_b32", t2, t2, 3))
    e(salu("s_add_u32", t1, t1, t2)); e(valu("v_add_u32", vpw, t1, vlin))
    e(valu("v_mul_u32_u24", T1, 48, Iq)); e(valu("v_add_u32", vem, EXM, T1))
    e(salu("s_lshl_b32", t1, sW, 2)); e(salu("s_add_u32", t1, t1, EXS)); e(valu("v_add_u32", ves, t1, vlin))
    e(valu("v_lshlrev_b32", T1, 4, Iq)); e(valu("v_add_u32", vesr, EXS, T1))
    e(salu("s_mul_i32", t1, sW, 13824)); e(valu("v_add_u32", vso4, t1, vlin))
    e(salu("s_add_u32", t1, t1, 9216)); e(valu("v_lshlrev_b32", T1, 3, L)); e(valu("v_add_u32", vso2, t1, T1))
    for i in range(12): e(valu("v_mov_b32", sm[i], 0))
    e(raw("s_waitcnt lgkmcnt(0)"))
    P += st("start", True)
    e(salu("s_and_b32", t0, sH, 3)); e(salu("s_mul_i32", t0, t0, 5)); e(salu("s_lshr_b32", t0, t0, 1)); e(salu("s_add_u32", t0, t0, sG))
    if "norot" in EXP: e(salu("s_mov_b32", t0, 0))
    for p in range(10):
        e(salu("s_add_u32", t1, t0, p)); e(salu("s_sub_u32", t2, t1, 10)); e(scmp("s_cmp_ge_u32", t1, 10)); e(salu("s_cselect_b32", t1, t2, t1))
        e(salu("s_sub_u32", t2, t1, 10)); e(scmp("s_cmp_ge_u32", t1, 10)); e(salu("s_cselect_b32", t1, t2, t1))
        e(salu("s_lshl_b32", rot[p], t1, 7))
    e(salu("s_mov_b32", S(44), S(26))); e(salu("s_mov_b32", S(45), S(27)))
    P += set_next(sR)
    P += flat(dma_wq(0) + dma_x(0) + dma_wq(1) + dma_wq(2) + dma_wq(3) + dma_k(0) + dma_x(1) + dma_k(1))
    P += max_init()
    P += sync("w0", "x0")
    P += g1_readsA(0) + g1_readsB(0)

    B = []
    B += set_v()
    fill = epilogue_fill()
    kread = {2: 0, 5: 1, 8: 2, 11: 3, 14: 4, 17: 5}
    for s in range(20):
        tags = []
        if s + 1 < 20:
            tags.append(f"w{s+1}")
            if (s + 1) % 2 == 0: tags.append(f"x{(s+1)//2}")
        B += sync(*tags)
        if s in (0, 5, 10, 15, 19) or "fine" in EXP: B += st(f"g1s{s}")
        mem = []
        if s + 4 < 20: mem += dma_wq(s + 4)
        if s == 0: mem += dma_x(2)
        if s % 2 == 1 and (s - 1) // 2 + 3 < 10: mem += dma_x((s - 1) // 2 + 3)
        if s in kread: mem += rd_k(kread[s])
        if s - 1 in kread: mem += dma_k(kread[s - 1] + 2)
        if s == 17: mem += dma_v(0)
        if s == 19: mem += dma_v(1)
        mf = [mfma(Qacc(j, qt), g1A(s, j), g1B(s * 9 + qt), 0 if s == 0 else None) for qt in range(9) for j in range(3)]
        if s < 19:
            B += step27(mf, g1_readsB(s + 1), g1_readsA(s + 1), mem, fill, 2.0)
            if s == 12:
                assert not fill, len(fill)
                B += set_o()
        else:
            def qw(qt, j):
                t = Qacc(j, qt)
                return [valu("v_cvt_pk_bf16_f32", t.sub(0), t.sub(0), t.sub(1)),
                        valu("v_cvt_pk_bf16_f32", t.sub(1), t.sub(2), t.sub(3)),
                        dsw("ds_write_b64", vqw, t.sub(0, 2), QP + qt * 6144 + j * 512, tag="q")]
            fill = [x for qt in range(9) for j in range(3) for x in qw(qt, j)]
            B += weave(mf, mem, fill, None, 3.0)
            B += fill
    B += sync()
    B += st("g2")
    def q_read(n):
        T, qt = (n // 9) % 6, n % 9
        return dsr("ds_read_b128", g2B(n), vlin, QP + (qt * 6 + T) * 1024)
    LA = 11
    for n in range(LA): B.append(q_read(n))
    for gi in range(2):
        mf = []; fixed = {}
        for T in range(6):
            for qt in range(9):
                n = (gi * 6 + T) * 9 + qt
                if n + LA < 108: fixed[len(mf)] = [q_read(n + LA)]
                for jj in range(4):
                    j = gi * 4 + jj
                    mf.append(mfma(St(j, qt), Kf(j, T), g2B(n), 0 if T == 0 else None))
        if gi == 0:
            for base, grp in ((37, rd_k(6)), (145, rd_k(7))):
                for i, g in enumerate(grp): fixed[base + 4 * i] = g
            fixed[74] = [waitlg("kr6"), barrier()]
            for i, g in enumerate(dma_v(2)): fixed[77 + 4 * i] = g
            B += weave(mf, None, None, fixed)
        else:
            if "fine" not in EXP: B += st("g2b")
            fixed[2] = [waitlg("kr7"), barrier()]
            for i, g in enumerate(dma_v(3)): fixed[5 + 4 * i] = g
            fill = []
            k = 0
            for j in range(4):
                for qt in range(9): fill += max_tile(j, qt, k); k += 1
            W = weave(mf[:180], None, fill, {g: x for g, x in fixed.items() if g < 180}, 0.5, 0)
            assert not fill
            B += W
            fill = []
            for ii in range(36):
                fill += max_tile(4 + ii % 4, ii // 4, k); k += 1
                if ii % 4 == 3: fill.append(dsw("ds_max_f32", vem, mx[ii // 4], 4 * (ii // 4), tag="mx"))
            B += weave(mf[180:], None, fill, None, 5.0)
            B += fill
    B += sync()
    if "fine" not in EXP: B += st("max")
    B += [dsr("ds_read_b128", V(MX, 4), vem, 0), dsr("ds_read_b128", V(MX + 4, 4), vem, 16), dsr("ds_read_b32", V(MX + 8), vem, 32)]
    for qt in range(9): B.append(valu("v_mul_f32", mx[qt], sC, mx[qt]))
    B += exp_fill(0)
    B += sync("v0")
    B += st("g3")
    B += g3_readsA(0) + g3_readsB(0)
    fill = exp_fill(1)
    for k in range(16):
        c, ks = k >> 1, k & 1
        mem = []
        pre = []
        if ks == 1:
            B += fill; fill = []
            tags = [f"v{c+1}"] if c < 7 else ["w0", "x0"]
            B += sync(*tags)
            if "fine" not in EXP: B += st(f"M{c}")
            if c + 2 < 8: fill = exp_fill(c + 2)
            if c + 4 < 8: mem += dma_v(c + 4)
            if c == 1: fill += max_init()
            if c == 3:
                B += [salu("s_add_u32", t3, sR, 1)] + set_next(t3)
            if c == 4: mem += dma_wq(0) + dma_wq(1)
            if c == 5: mem += dma_wq(2) + dma_wq(3)
            if c == 6: mem += dma_x(0) + dma_k(0); fill = sum_reduce()
            if c == 7: mem += dma_x(1) + dma_k(1); fill = sum_final()
            if c % 2 == 1:
                d = (RA - RB) if (c + 1) % 4 == 2 else (RB - RA)
                B += [valu("v_add_u32", vvr[j], hex(d & 0xffffffff), vvr[j]) for j in range(3)]
        mf = [mfma(Oacc(j, qt), g3A(k, j), g3B(k * 9 + qt), 0 if k == 0 else None) for qt in range(9) for j in range(3)]
        if k < 15: rB, rA = g3_readsB(k + 1), g3_readsA(k + 1)
        else: rB, rA = g1_readsB(0), g1_readsA(0)
        B += step27(mf, rB, rA, mem, fill, 4.0 if k > 0 else 7.0)
    B += fill
    B += st("end")
    tail = ["s_add_u32 s48, s48, 1", "s_cmp_lt_u32 s48, 4", "s_cbranch_scc1 L1_loop"]
    E = st("loopend", True) + epilogue_fill() + [waitvm()] + st("fin", True) + st.dump("s3")
    for x in EXP:
        if x.startswith("drop:"):
            B = [i for i in B if i.kind != x[5:]]
    out = []
    bs = build_loop(P, B, E, "L1_loop", tail, out)
    out.append("L1_end:"); out.append("s_endpgm")
    sys.stderr.write("k1 body stats: %s\n" % bs)
    return out

def kd(name, vg, acc):
    return ['.amdhsa_kernel ' + name, f"  .amdhsa_next_free_vgpr {vg}", "  .amdhsa_next_free_sgpr 102", f"  .amdhsa_accum_offset {acc}",
            "  .amdhsa_group_segment_fixed_size 0", "  .amdhsa_kernarg_size 104", "  .amdhsa_user_sgpr_count 2",
            "  .amdhsa_user_sgpr_kernarg_segment_ptr 1", "  .amdhsa_system_sgpr_workgroup_id_x 1", ".end_amdhsa_kernel"]

def main(path, which):
    if STAMP: open("stamps.txt", "w").close()
    from gen2 import k2, LDS2
    hdr = open(f"cdna_kernels/{NAME}.s.ref").read().split("\n")
    hdr = [l for l in hdr if l.startswith(";") and "@launch" not in l and "Override" not in l and "grid=ceil" not in l]
    L = list(hdr)
    if "1" in which: L.append(f"; @launch kernel=attn_kernel grid=(256,1,1) block=(256,1,1) lds={LDS1}")
    if "2" in which: L.append(f"; @launch kernel=oproj_kernel grid=(240,1,1) block=(256,1,1) lds={LDS2}")
    L += ['.amdgcn_target "amdgcn-amd-amdhsa--gfx950"', ".text"]
    for nm, fn in (("attn_kernel", k1), ("oproj_kernel", k2)):
        L += [f".globl {nm}", ".p2align 8", f".type {nm},@function", f"{nm}:"] + fn()
    L += ['.section .rodata,"a"', ".p2align 6"] + kd("attn_kernel", 512, 256) + [".p2align 6"] + kd("oproj_kernel", 512, 256)
    open(path, "w").write("\n".join(L) + "\n")

if __name__ == "__main__":
    main(sys.argv[1], sys.argv[2] if len(sys.argv) > 2 else "12")
```

```python
import sys, struct, math
sys.path.insert(0, "tools")
from kgen import *

NAME = "concat_heads__mha_block_cached__gqa_block_cached__near_ridge"
def f32bits(x): return struct.unpack("<I", struct.pack("<f", x))[0]

QP = 0; QS = 18432
RA = 55296; KB = 24832
RB = 104960
EXM = 154112; EXS = 154880
LDS1 = 157952
VSLOT = [RB, RB + 24576, RA, RA + KB]

import os
KVFL = os.environ.get("KVFL", "nt")
WQFL = os.environ.get("WQFL", "")
XFL = os.environ.get("XFL", "")
OSTFL = os.environ.get("OSTFL", "nt")
EXP = os.environ.get("EXP", "").split(",")

import os
STAMP = os.environ.get("STAMP", "")
def k1():
    st = Stamps(STAMP.startswith("1"), "s48", int(STAMP[2:] or 2) if STAMP.startswith("1") else 0, 26)
    sW = S(3)
    X, WQ, K, Vd, O = S(28, 4), S(32, 4), S(36, 4), S(40, 4), S(44, 4)
    sR, sH, sG = S(48), S(49), S(50)
    t0, t1, t2, t3 = S(51), S(52), S(53), S(54)
    so = [S(56), S(57), S(58), S(59)]
    mX, mWQ, mK, mV = S(62), S(63), S(64), S(65)
    sC, s4k, s8k = S(66), S(67), S(68)
    rot = [S(i) for i in (12, 13, 22, 23, 24, 25, 55, 60, 61, 69)]
    vx = [V(1 + i) for i in range(5)]
    vw = [V(6 + i) for i in range(3)]
    vk = [V(9 + i) for i in range(3)]
    vv = [V(12 + i) for i in range(3)]
    vxr = [V(15), V(16)]
    vwr = [V(17 + i) for i in range(3)]
    vvr = [V(20 + i) for i in range(3)]
    vkr, vqw, vlin, vpw, vem, ves, vesr, vso4, vso2 = [V(23 + i) for i in range(9)]
    MX = 32
    SM = 44
    TP = 56
    mx = [V(MX + i) for i in range(12)]
    sm = [V(SM + i) for i in range(12)]
    tp = [V(TP + i) for i in range(8)]
    def St(j, qt):
        if j < 4: return V(64 + (j * 9 + qt) * 4, 4)
        if j < 6: return A(((j - 4) * 9 + qt) * 4, 4)
        if j == 6: return A(72 + qt * 4, 4) if qt < 6 else V(208 + (qt - 6) * 4, 4)
        return V(220 + qt * 4, 4)
    KR = [24, 48, 72, 0, 96, 120, 144, 168]
    def Kf(j, T): return A(KR[j] + 4 * T, 4)
    def Qacc(j, qt): return V(64 + (j * 9 + qt) * 4, 4)
    def Oacc(j, qt): return A(148 + (j * 9 + qt) * 4, 4)
    def g1A(s, j): return V(172 + ((s & 1) * 3 + j) * 4, 4)
    def g1B(n): return V(196 + (n % 15) * 4, 4)
    def g3A(s, j): return A(((s & 1) * 3 + j) * 4, 4)
    def g3B(n): return A(96 + (n % 13) * 4, 4)
    def g2B(n): return A(192 + (n % 16) * 4, 4)

    soi = [0]
    def nso():
        soi[0] = (soi[0] + 1) % 4
        return so[soi[0]]

    def dma_x(p):
        slot = (p + 2) % 3; s_ = rot[p]
        g = [[salu("s_add_u32", "m0", mX, QP + slot * QS),
              raw("s_mov_b32 exec_hi, 0", "salu"), dma(vx[0], X, s_, 0, XFL, tag=f"x{p}"), raw("s_mov_b32 exec_hi, -1", "salu")]]
        g += [[dma(vx[1 + i], X, s_, 512 + 1024 * i, XFL, tag=f"x{p}")] for i in range(4)]
        return g
    def dma_wq(s):
        s_ = nso()
        g = [[dma(vw[i], WQ, s_, 1024 * i, WQFL, tag=f"w{s}")] for i in range(3)]
        g[0] = [salu("s_add_u32", "m0", mWQ, (s % 4) * 12288), salu("s_mul_i32", s_, rot[s >> 1], 6144)] + \
               ([salu("s_add_u32", s_, s_, 32 * 12288)] if s & 1 else []) + g[0]
        return g
    def dma_k(j):
        kb = (j + 4) % 8; g = []
        for hf in range(2):
            s_ = nso()
            h = [[dma(vk[i], K, s_, 1024 * i, KVFL, tag=f"k{j}")] for i in range(3)]
            h[0] = [salu("s_add_u32", "m0", mK, (j % 2) * KB + hf * 3136), salu("s_mov_b32", s_, kb * 24576 + hf * 3072)] + h[0]
            g += h
        return g
    def dma_v(c):
        g = []
        for hf in range(2):
            s_ = nso()
            h = [[dma(vv[i], Vd, s_, 1024 * i, KVFL, tag=f"v{c}")] for i in range(3)]
            h[0] = [salu("s_add_u32", "m0", mV, VSLOT[c % 4] + hf * 3072), salu("s_mov_b32", s_, c * 24576 + hf * 3072)] + h[0]
            g += h
        return g
    def rd_k(j):
        g = [[dsr("ds_read_b128", Kf(j, T), vkr, (j % 2) * KB + T * 64, tag=f"kr{j}")] for T in range(6)]
        g[0] = [waitvm(f"k{j}")] + g[0]
        return g
    def flat(groups): return [i for g in groups for i in g]

    def g1_readsB(s):
        p = s >> 1; slot = (p + 2) % 3
        return [dsr("ds_read_b128", g1B(s * 9 + qt), vxr[s & 1], QP + slot * QS + qt * 2048) for qt in range(9)]
    def g1_readsA(s):
        return [dsr("ds_read_b64_tr_b16", g1A(s, j).sub(2 * hf, 2), vwr[j], (s % 4) * 12288 + hf * 1536) for j in range(3) for hf in range(2)]
    def g3_readsB(k):
        c, ks = k >> 1, k & 1
        return [dsr("ds_read_b128", g3B(k * 9 + qt), vlin, QP + (c % 3) * QS + (ks * 9 + qt) * 1024) for qt in range(9)]
    def g3_readsA(k):
        c, ks = k >> 1, k & 1
        off = (VSLOT[c % 4] - (RB if c % 4 < 2 else RA)) + ks * 12288
        return [dsr("ds_read_b64_tr_b16", g3A(k, j).sub(2 * hf, 2), vvr[j], off + hf * 6144) for j in range(3) for hf in range(2)]

    def step27(mf, rB, rA, mem, fill, rate):
        fixed = {}
        mem = list(mem)
        vm = [g for g in mem if any(x.kind == "dma" for x in g)]
        ds = [g for g in mem if not any(x.kind == "dma" for x in g)]
        n = len(vm)
        pos = [int(1 + i * 26.0 / n) for i in range(n)] if n else []
        for g, grp in zip(pos, vm): fixed[g] = grp
        order = [rB[0], rA[0], rB[1], rA[1], rB[2], rA[2], rB[3], rA[3], rB[4], rA[4], rB[5], rA[5], rB[6], rB[7], rB[8]]
        free = [g for g in range(27) if g not in fixed]
        seq = [[r] for r in order] + ds
        while len(seq) > len(free): seq = merge_once(seq, len(seq) - len(free))
        for g, grp in zip(free, seq): fixed[g] = grp
        for g, grp in fixed.items():
            for x in grp:
                if x in rB: assert g >= 3 * (rB.index(x) - 4) + 2, (g, rB.index(x))
        return weave(mf, None, fill, fixed, rate)
    def merge_once(mem, k):
        out = []; i = 0
        while i < len(mem):
            if k > 0 and i + 1 < len(mem):
                out.append(mem[i] + mem[i + 1]); i += 2; k -= 1
            else:
                out.append(mem[i]); i += 1
        return out

    def set_next(rn):
        L = [scmp("s_cmp_lt_u32", rn, 2),
             salu("s_cselect_b64", S(28, 2), S(4, 2), S(14, 2)),
             salu("s_cselect_b64", S(32, 2), S(10, 2), S(20, 2)),
             salu("s_cselect_b64", S(36, 2), S(6, 2), S(16, 2)),
             salu("s_and_b32", t0, rn, 1), salu("s_lshl_b32", t0, t0, 3), salu("s_add_u32", t0, t0, sG),
             salu("s_mul_i32", t1, t0, 184320),
             salu("s_add_u32", S(28), S(28), t1), salu("s_addc_u32", S(29), S(29), 0),
             salu("s_mul_i32", t1, sH, 384),
             salu("s_add_u32", S(32), S(32), t1), salu("s_addc_u32", S(33), S(33), 0),
             salu("s_sub_u32", t2, 7864320, t1),
             salu("s_lshl_b32", t0, t0, 5), salu("s_add_u32", t0, t0, sH), salu("s_mul_i32", t1, t0, 196608),
             salu("s_add_u32", S(36), S(36), t1), salu("s_addc_u32", S(37), S(37), 0),
             scmp("s_cmp_lt_u32", rn, 4),
             salu("s_cselect_b32", S(30), 184320, 0),
             salu("s_cselect_b32", S(34), t2, 0),
             salu("s_cselect_b32", S(38), 196608, 0)]
        if "nok" in EXP: L.append(salu("s_mov_b32", S(38), 0))
        if "nox" in EXP: L.append(salu("s_mov_b32", S(30), 0))
        if "nowq" in EXP: L.append(salu("s_mov_b32", S(34), 0))
        return L
    def set_v():
        return [scmp("s_cmp_lt_u32", sR, 2),
                salu("s_cselect_b64", S(40, 2), S(8, 2), S(18, 2)),
                salu("s_and_b32", t0, sR, 1), salu("s_lshl_b32", t0, t0, 3), salu("s_add_u32", t0, t0, sG),
                salu("s_lshl_b32", t0, t0, 5), salu("s_add_u32", t0, t0, sH), salu("s_mul_i32", t1, t0, 196608),
                salu("s_add_u32", S(40), S(40), t1), salu("s_addc_u32", S(41), S(41), 0)]
    def set_o():
        return [salu("s_lshl_b32", t0, sR, 3), salu("s_add_u32", t0, t0, sG), salu("s_lshl_b32", t0, t0, 5),
                salu("s_add_u32", t0, t0, sH), salu("s_mul_i32", t1, t0, 55296),
                salu("s_add_u32", S(44), S(26), t1), salu("s_addc_u32", S(45), S(27), 0),
                salu("s_mov_b32", S(46), 0 if "nost" in EXP else 55296)]

    def epilogue_fill():
        F = []
        sets = [(V(TP, 4), V(TP + 4, 4)), (V(MX, 4), V(MX + 4, 4))]
        for qt in range(9):
            pk, tm = sets[qt & 1]
            for j in range(3):
                for r in range(4): F.append(accrd(tm.sub(r), Oacc(j, qt).sub(r)))
                for r in range(4): F.append(valu("v_mul_f32", tm.sub(r), tm.sub(r), sm[qt]))
                if j < 2:
                    F.append(valu("v_cvt_pk_bf16_f32", pk.sub(2 * j), tm.sub(0), tm.sub(1)))
                    F.append(valu("v_cvt_pk_bf16_f32", pk.sub(2 * j + 1), tm.sub(2), tm.sub(3)))
                    if j == 1:
                        sof = [0, s4k, s8k][qt // 4]
                        F.append(vst(pk, vso4, O, sof, (qt % 4) * 1024, OSTFL, tag="ost"))
                else:
                    p2 = V(MX + 8 + 2 * (qt & 1), 2)
                    F.append(valu("v_cvt_pk_bf16_f32", p2.sub(0), tm.sub(0), tm.sub(1)))
                    F.append(valu("v_cvt_pk_bf16_f32", p2.sub(1), tm.sub(2), tm.sub(3)))
                    F.append(vst(p2, vso2, O, [0, s4k][qt // 8], (qt % 8) * 512, OSTFL, tag="ost"))
        return F
    def exp_fill(c):
        j = (c + 4) % 8; F = []
        for qt in range(9):
            t = St(j, qt)
            if t.k == "a":
                tm = V(TP + 4 * (qt & 1), 4)
                for r in range(4): F.append(accrd(tm.sub(r), t.sub(r)))
                t = tm
            for r in range(4): F.append(valu("v_fma_f32", t.sub(r), t.sub(r), sC, Neg(mx[qt])))
            for r in range(4): F.append(trans("v_exp_f32", t.sub(r), t.sub(r)))
            if c == 0:
                F.append(valu("v_add_f32", sm[qt], t.sub(0), t.sub(1)))
                rs = [2, 3]
            else: rs = [0, 1, 2, 3]
            for r in rs: F.append(valu("v_add_f32", sm[qt], sm[qt], t.sub(r)))
            F.append(valu("v_cvt_pk_bf16_f32", t.sub(0), t.sub(0), t.sub(1)))
            F.append(valu("v_cvt_pk_bf16_f32", t.sub(1), t.sub(2), t.sub(3)))
            F.append(dsw("ds_write_b64", vpw, t.sub(0, 2), QP + (c % 3) * QS + qt * 1024, tag=f"p{c}"))
        return F
    def max_tile(j, qt, k):
        t = St(j, qt); F = []
        if t.k == "a":
            tm = V(TP + 4 * (k & 1), 4)
            for r in range(4): F.append(accrd(tm.sub(r), t.sub(r)))
            t = tm
        if j == 0: F.append(valu("v_max_f32", mx[qt], t.sub(0), t.sub(1)))
        else: F.append(valu("v_max3_f32", mx[qt], mx[qt], t.sub(0), t.sub(1)))
        F.append(valu("v_max3_f32", mx[qt], mx[qt], t.sub(2), t.sub(3)))
        return F
    def sum_reduce():
        F = []
        for k in range(3):
            a, b, c_, d = sm[4 * k], sm[4 * k + 2], sm[4 * k + 1], sm[4 * k + 3]
            F.append(permswap("v_permlane32_swap_b32", a, b)); F.append(permswap("v_permlane32_swap_b32", c_, d))
            F.append(valu("v_add_f32", a, a, b)); F.append(valu("v_add_f32", c_, c_, d))
            F.append(permswap("v_permlane16_swap_b32", a, c_))
            F.append(valu("v_add_f32", a, a, c_))
            F.append(dsw("ds_write_b32", ves, a, k * 1024, tag="sumw"))
        return F
    def sum_final():
        F = []
        for qt in range(9): F.append(dsr("ds_read_b128", V(64 + 4 * qt, 4), vesr, qt * 256))
        for qt in range(9):
            t = V(64 + 4 * qt, 4)
            F.append(valu("v_add_f32", t.sub(0), t.sub(0), t.sub(1)))
            F.append(valu("v_add_f32", t.sub(2), t.sub(2), t.sub(3)))
            F.append(valu("v_add_f32", t.sub(0), t.sub(0), t.sub(2)))
            F.append(trans("v_rcp_f32", sm[qt], t.sub(0)))
        return F
    def max_init():
        F = [valu("v_mov_b32", tp[r], "0xff800000") for r in range(4)]
        F += [dsw("ds_write_b128", vem, V(TP, 4), 16 * k, tag="mi") for k in range(3)]
        return F
    def sync(*vmtags):
        return ([waitvm(*vmtags)] if vmtags else []) + [waitlg(), barrier()]

    P = []
    e = P.append
    e(raw("s_cmp_ge_u32 s2, 256")); e(raw("s_cbranch_scc1 L1_end"))
    e(raw("s_load_dwordx16 s[4:19], s[0:1], 0")); e(raw("s_load_dwordx4 s[20:23], s[0:1], 64"))
    e(raw("s_load_dwordx2 s[26:27], s[0:1], 96"))
    L, Iq, G, R_, C_, T1, T2, T3, T4 = [V(64 + i) for i in range(9)]
    e(valu("v_lshrrev_b32", T1, 6, V(0))); e(rfl(sW, T1))
    e(valu("v_and_b32", L, 63, V(0))); e(valu("v_and_b32", Iq, 15, L)); e(valu("v_lshrrev_b32", G, 4, L))
    e(valu("v_lshrrev_b32", R_, 2, Iq)); e(valu("v_and_b32", C_, 3, L))
    if "badmap" in EXP:
        e(salu("s_lshr_b32", t0, S(2), 5)); e(salu("s_and_b32", t1, S(2), 31))
    else:
        e(salu("s_and_b32", t0, S(2), 7)); e(salu("s_lshr_b32", t1, S(2), 3))
    e(salu("s_and_b32", t2, t1, 3)); e(salu("s_lshl_b32", t0, t0, 2)); e(salu("s_add_u32", sH, t0, t2))
    e(salu("s_lshr_b32", sG, t1, 2)); e(salu("s_mov_b32", sR, 0))
    e(salu("s_mul_i32", mX, sW, 4608)); e(salu("s_mul_i32", mWQ, sW, 3072)); e(salu("s_add_u32", mWQ, mWQ, RB))
    e(salu("s_mul_i32", mK, sW, 6208)); e(salu("s_add_u32", mK, mK, RA)); e(salu("s_mul_i32", mV, sW, 6144))
    e(salu("s_mov_b32", sC, hex(f32bits(192 ** -0.5 * math.log2(math.e))))); e(salu("s_mov_b32", s4k, 4096)); e(salu("s_mov_b32", s8k, 8192))
    for r in (31, 35, 39, 43, 47): e(salu("s_mov_b32", S(r), "0x20000"))
    e(salu("s_mov_b32", S(42), 0 if "nov" in EXP else 196608)); e(salu("s_mov_b32", S(46), 0))
    e(salu("s_mul_i32", t0, sW, 36))
    for i in range(5):
        e(valu("v_lshrrev_b32", T1, 3, L)); e(valu("v_add_u32", T1, t0, T1))
        if i: e(valu("v_add_u32", T1, 4 + 8 * (i - 1), T1))
        e(valu("v_bfe_u32", T2, T1, 1, 3)); e(valu("v_and_b32", T3, 7, L)); e(valu("v_xor_b32", T2, T2, T3))
        e(valu("v_mul_u32_u24", T1, 1280, T1)); e(valu("v_lshl_add_u32", vx[i], T2, 4, T1))
        if i: e(valu("v_subrev_u32", vx[i], 512 + 1024 * (i - 1), vx[i]))
    e(salu("s_and_b32", t1, sW, 1)); e(salu("s_lshl_b32", t1, t1, 1))
    e(salu("s_mul_i32", t2, sW, 8 * 12288)); e(salu("s_mul_i32", t3, sW, 6144))
    for i in range(3):
        e(valu("v_add_u32", T1, 64 * i, L)); e(valu("v_mul_u32_u24", T2, 2731, T1)); e(valu("v_lshrrev_b32", T2, 16, T2))
        e(valu("v_mul_u32_u24", T3, 24, T2)); e(valu("v_sub_u32", T1, T1, T3))
        e(valu("v_bfe_u32", T3, T2, 1, 1)); e(valu("v_or_b32", T3, t1, T3)); e(valu("v_lshlrev_b32", T3, 1, T3)); e(valu("v_xor_b32", T3, T3, T1))
        e(valu("v_mul_u32_u24", T4, 12288, T2)); e(valu("v_lshl_add_u32", T4, T3, 4, T4)); e(valu("v_add_u32", T4, t2, T4))
        e(valu("v_subrev_u32", vw[i], 1024 * i, T4))
        e(valu("v_bfe_u32", T3, T2, 1, 2)); e(valu("v_xor_b32", T3, T3, T1))
        e(valu("v_mul_u32_u24", T4, 384, T2)); e(valu("v_add_u32", T4, t3, T4)); e(valu("v_subrev_u32", T4, 1024 * i, T4))
        e(valu("v_lshl_add_u32", vk[i], T3, 4, T4))
        e(valu("v_bfe_u32", T3, T2, 1, 2)); e(valu("v_lshlrev_b32", T3, 1, T3)); e(valu("v_xor_b32", T3, T3, T1))
        e(valu("v_lshl_add_u32", vv[i], T3, 4, T4))
    e(valu("v_bfe_u32", T1, Iq, 1, 3)); e(valu("v_xor_b32", T1, T1, G)); e(valu("v_lshlrev_b32", T1, 4, T1))
    e(valu("v_lshl_add_u32", vxr[0], Iq, 7, T1)); e(valu("v_xor_b32", vxr[1], 64, vxr[0]))
    e(salu("s_mul_i32", t0, sW, 3))
    for j in range(3):
        e(salu("s_add_u32", t1, t0, j))
        e(valu("v_lshrrev_b32", T1, 1, R_)); e(valu("v_and_b32", T2, 1, G)); e(valu("v_lshl_add_u32", T1, T2, 1, T1))
        e(valu("v_xor_b32", T1, t1, T1)); e(valu("v_lshlrev_b32", T1, 5, T1)); e(valu("v_lshl_add_u32", T1, C_, 3, T1))
        e(valu("v_lshl_add_u32", T2, G, 3, R_)); e(valu("v_mul_u32_u24", T2, 384, T2)); e(valu("v_add_u32", T2, T1, T2))
        e(valu("v_add_u32", vwr[j], RB, T2))
        e(valu("v_lshl_add_u32", T2, G, 2, R_)); e(valu("v_mul_u32_u24", T2, 384, T2)); e(valu("v_add_u32", T2, T1, T2))
        e(valu("v_add_u32", vvr[j], RB, T2))
    e(valu("v_bfe_u32", T1, Iq, 1, 2)); e(valu("v_xor_b32", T1, T1, G)); e(valu("v_lshlrev_b32", T1, 4, T1))
    e(valu("v_mul_u32_u24", T2, 384, Iq)); e(valu("v_add_u32", T1, T1, T2)); e(valu("v_lshrrev_b32", T2, 3, Iq))
    e(valu("v_lshl_add_u32", T1, T2, 6, T1)); e(valu("v_add_u32", vkr, mK, T1))
    e(salu("s_mul_i32", t1, sW, 1536)); e(valu("v_lshrrev_b32", T1, 1, G)); e(valu("v_lshlrev_b32", T1, 8, T1))
    e(valu("v_lshl_add_u32", T1, Iq, 4, T1)); e(valu("v_and_b32", T2, 1, G)); e(valu("v_lshl_add_u32", T1, T2, 3, T1))
    e(valu("v_add_u32", vqw, t1, T1))
    e(valu("v_lshlrev_b32", vlin, 4, L))
    e(salu("s_lshr_b32", t1, sW, 1)); e(salu("s_mul_i32", t1, t1, 9216)); e(salu("s_and_b32", t2, sW, 1)); e(salu("s_lshl_b32", t2, t2, 3))
    e(salu("s_add_u32", t1, t1, t2)); e(valu("v_add_u32", vpw, t1, vlin))
    e(valu("v_mul_u32_u24", T1, 48, Iq)); e(valu("v_add_u32", vem, EXM, T1))
    e(salu("s_lshl_b32", t1, sW, 2)); e(salu("s_add_u32", t1, t1, EXS)); e(valu("v_add_u32", ves, t1, vlin))
    e(valu("v_lshlrev_b32", T1, 4, Iq)); e(valu("v_add_u32", vesr, EXS, T1))
    e(salu("s_mul_i32", t1, sW, 13824)); e(valu("v_add_u32", vso4, t1, vlin))
    e(salu("s_add_u32", t1, t1, 9216)); e(valu("v_lshlrev_b32", T1, 3, L)); e(valu("v_add_u32", vso2, t1, T1))
    for i in range(12): e(valu("v_mov_b32", sm[i], 0))
    e(raw("s_waitcnt lgkmcnt(0)"))
    P += st("start", True)
    e(salu("s_and_b32", t0, sH, 3)); e(salu("s_mul_i32", t0, t0, 5)); e(salu("s_lshr_b32", t0, t0, 1)); e(salu("s_add_u32", t0, t0, sG))
    if "norot" in EXP: e(salu("s_mov_b32", t0, 0))
    for p in range(10):
        e(salu("s_add_u32", t1, t0, p)); e(salu("s_sub_u32", t2, t1, 10)); e(scmp("s_cmp_ge_u32", t1, 10)); e(salu("s_cselect_b32", t1, t2, t1))
        e(salu("s_sub_u32", t2, t1, 10)); e(scmp("s_cmp_ge_u32", t1, 10)); e(salu("s_cselect_b32", t1, t2, t1))
        e(salu("s_lshl_b32", rot[p], t1, 7))
    e(salu("s_mov_b32", S(44), S(26))); e(salu("s_mov_b32", S(45), S(27)))
    P += set_next(sR)
    P += flat(dma_wq(0) + dma_x(0) + dma_wq(1) + dma_wq(2) + dma_wq(3) + dma_k(0) + dma_x(1) + dma_k(1))
    P += max_init()
    P += sync("w0", "x0")
    P += g1_readsA(0) + g1_readsB(0)

    B = []
    B += set_v()
    fill = epilogue_fill()
    kread = {2: 0, 5: 1, 8: 2, 11: 3, 14: 4, 17: 5}
    for s in range(20):
        tags = []
        if s + 1 < 20:
            tags.append(f"w{s+1}")
            if (s + 1) % 2 == 0: tags.append(f"x{(s+1)//2}")
        B += sync(*tags)
        if s in (0, 5, 10, 15, 19) or "fine" in EXP: B += st(f"g1s{s}")
        mem = []
        if s + 4 < 20: mem += dma_wq(s + 4)
        if s == 0: mem += dma_x(2)
        if s % 2 == 1 and (s - 1) // 2 + 3 < 10: mem += dma_x((s - 1) // 2 + 3)
        if s in kread: mem += rd_k(kread[s])
        if s - 1 in kread: mem += dma_k(kread[s - 1] + 2)
        if s == 17: mem += dma_v(0)
        if s == 19: mem += dma_v(1)
        mf = [mfma(Qacc(j, qt), g1A(s, j), g1B(s * 9 + qt), 0 if s == 0 else None) for qt in range(9) for j in range(3)]
        if s < 19:
            B += step27(mf, g1_readsB(s + 1), g1_readsA(s + 1), mem, fill, 2.0)
            if s == 12:
                assert not fill, len(fill)
                B += set_o()
        else:
            def qw(qt, j):
                t = Qacc(j, qt)
                return [valu("v_cvt_pk_bf16_f32", t.sub(0), t.sub(0), t.sub(1)),
                        valu("v_cvt_pk_bf16_f32", t.sub(1), t.sub(2), t.sub(3)),
                        dsw("ds_write_b64", vqw, t.sub(0, 2), QP + qt * 6144 + j * 512, tag="q")]
            fill = [x for qt in range(9) for j in range(3) for x in qw(qt, j)]
            B += weave(mf, mem, fill, None, 3.0)
            B += fill
    B += sync()
    B += st("g2")
    def q_read(n):
        T, qt = (n // 9) % 6, n % 9
        return dsr("ds_read_b128", g2B(n), vlin, QP + (qt * 6 + T) * 1024)
    LA = 11
    for n in range(LA): B.append(q_read(n))
    for gi in range(2):
        mf = []; fixed = {}
        for T in range(6):
            for qt in range(9):
                n = (gi * 6 + T) * 9 + qt
                if n + LA < 108: fixed[len(mf)] = [q_read(n + LA)]
                for jj in range(4):
                    j = gi * 4 + jj
                    mf.append(mfma(St(j, qt), Kf(j, T), g2B(n), 0 if T == 0 else None))
        if gi == 0:
            for base, grp in ((37, rd_k(6)), (145, rd_k(7))):
                for i, g in enumerate(grp): fixed[base + 4 * i] = g
            fixed[74] = [waitlg("kr6"), barrier()]
            for i, g in enumerate(dma_v(2)): fixed[77 + 4 * i] = g
            B += weave(mf, None, None, fixed)
        else:
            if "fine" not in EXP: B += st("g2b")
            fixed[2] = [waitlg("kr7"), barrier()]
            for i, g in enumerate(dma_v(3)): fixed[5 + 4 * i] = g
            fill = []
            k = 0
            for j in range(4):
                for qt in range(9): fill += max_tile(j, qt, k); k += 1
            W = weave(mf[:180], None, fill, {g: x for g, x in fixed.items() if g < 180}, 0.5, 0)
            assert not fill
            B += W
            fill = []
            for ii in range(36):
                fill += max_tile(4 + ii % 4, ii // 4, k); k += 1
                if ii % 4 == 3: fill.append(dsw("ds_max_f32", vem, mx[ii // 4], 4 * (ii // 4), tag="mx"))
            B += weave(mf[180:], None, fill, None, 5.0)
            B += fill
    B += sync()
    if "fine" not in EXP: B += st("max")
    B += [dsr("ds_read_b128", V(MX, 4), vem, 0), dsr("ds_read_b128", V(MX + 4, 4), vem, 16), dsr("ds_read_b32", V(MX + 8), vem, 32)]
    for qt in range(9): B.append(valu("v_mul_f32", mx[qt], sC, mx[qt]))
    B += exp_fill(0)
    B += sync("v0")
    B += st("g3")
    B += g3_readsA(0) + g3_readsB(0)
    fill = exp_fill(1)
    for k in range(16):
        c, ks = k >> 1, k & 1
        mem = []
        pre = []
        if ks == 1:
            B += fill; fill = []
            tags = [f"v{c+1}"] if c < 7 else ["w0", "x0"]
            B += sync(*tags)
            if "fine" not in EXP: B += st(f"M{c}")
            if c + 2 < 8: fill = exp_fill(c + 2)
            if c + 4 < 8: mem += dma_v(c + 4)
            if c == 1: fill += max_init()
            if c == 3:
                B += [salu("s_add_u32", t3, sR, 1)] + set_next(t3)
            if c == 4: mem += dma_wq(0) + dma_wq(1)
            if c == 5: mem += dma_wq(2) + dma_wq(3)
            if c == 6: mem += dma_x(0) + dma_k(0); fill = sum_reduce()
            if c == 7: mem += dma_x(1) + dma_k(1); fill = sum_final()
            if c % 2 == 1:
                d = (RA - RB) if (c + 1) % 4 == 2 else (RB - RA)
                B += [valu("v_add_u32", vvr[j], hex(d & 0xffffffff), vvr[j]) for j in range(3)]
        mf = [mfma(Oacc(j, qt), g3A(k, j), g3B(k * 9 + qt), 0 if k == 0 else None) for qt in range(9) for j in range(3)]
        if k < 15: rB, rA = g3_readsB(k + 1), g3_readsA(k + 1)
        else: rB, rA = g1_readsB(0), g1_readsA(0)
        B += step27(mf, rB, rA, mem, fill, 4.0 if k > 0 else 7.0)
    B += fill
    B += st("end")
    tail = ["s_add_u32 s48, s48, 1", "s_cmp_lt_u32 s48, 4", "s_cbranch_scc1 L1_loop"]
    E = st("loopend", True) + epilogue_fill() + [waitvm()] + st("fin", True) + st.dump("s3")
    for x in EXP:
        if x.startswith("drop:"):
            B = [i for i in B if i.kind != x[5:]]
    out = []
    bs = build_loop(P, B, E, "L1_loop", tail, out)
    out.append("L1_end:"); out.append("s_endpgm")
    sys.stderr.write("k1 body stats: %s\n" % bs)
    return out

def kd(name, vg, acc):
    return ['.amdhsa_kernel ' + name, f"  .amdhsa_next_free_vgpr {vg}", "  .amdhsa_next_free_sgpr 102", f"  .amdhsa_accum_offset {acc}",
            "  .amdhsa_group_segment_fixed_size 0", "  .amdhsa_kernarg_size 104", "  .amdhsa_user_sgpr_count 2",
            "  .amdhsa_user_sgpr_kernarg_segment_ptr 1", "  .amdhsa_system_sgpr_workgroup_id_x 1", ".end_amdhsa_kernel"]

def main(path, which):
    if STAMP: open("stamps.txt", "w").close()
    from gen2 import k2, LDS2
    hdr = open(f"cdna_kernels/{NAME}.s.ref").read().split("\n")
    hdr = [l for l in hdr if l.startswith(";") and "@launch" not in l and "Override" not in l and "grid=ceil" not in l]
    L = list(hdr)
    if "1" in which: L.append(f"; @launch kernel=attn_kernel grid=(256,1,1) block=(256,1,1) lds={LDS1}")
    if "2" in which: L.append(f"; @launch kernel=oproj_kernel grid=(240,1,1) block=(256,1,1) lds={LDS2}")
    L += ['.amdgcn_target "amdgcn-amd-amdhsa--gfx950"', ".text"]
    for nm, fn in (("attn_kernel", k1), ("oproj_kernel", k2)):
        L += [f".globl {nm}", ".p2align 8", f".type {nm},@function", f"{nm}:"] + fn()
    L += ['.section .rodata,"a"', ".p2align 6"] + kd("attn_kernel", 512, 256) + [".p2align 6"] + kd("oproj_kernel", 512, 256)
    open(path, "w").write("\n".join(L) + "\n")

if __name__ == "__main__":
    main(sys.argv[1], sys.argv[2] if len(sys.argv) > 2 else "12")
```

```python
import sys, os
from kgen import *
NR = int(os.environ.get("NR", "20"))
SKEW = int(os.environ.get("SKEW", "10"))
LDS2 = NR * 8192
OLDFL = os.environ.get("OLDFL", "sc1")
WOFL = os.environ.get("WOFL", "")
EXP2 = os.environ.get("EXP2", "").split(",")
XOFF = 64 << 20
FOFF = 96 << 20
WIN = int(os.environ.get("WIN", "12"))
DEPTH = int(os.environ.get("DEPTH", "6"))
assert DEPTH + SKEW + 4 <= NR

def k2():
    st = Stamps(os.environ.get('STAMP', '').startswith('2'), 's48', 1, 10, base=86, rtb=84)
    sW = S(3)
    WO, O, OUT, XS = S(28, 4), S(32, 4), S(36, 4), S(40, 4)
    t0, t1, t2, t3, t4 = S(51), S(52), S(53), S(54), S(55)
    sPos, sOb, sWb = S(56), S(57), S(58)
    mW = S(62)
    sMT, sNT, sBR, sKH, sPart = S(63), S(64), S(65), S(66), S(67)
    vo = [V(1 + i) for i in range(3)]
    vw = [V(4), V(5)]
    vr = [V(6 + i) for i in range(8)]
    vlin, vout, vfl = V(14), V(15), V(16)
    def acc(u, i): return V(160 + (u * 3 + i) * 4, 4)
    def fA(t, u): return V(96 + ((t & 1) * 8 + u) * 4, 4)
    def fB(k, i): return A(((k % NR) * 3 + i) * 4, 4)
    def loads(k):
        wb = (k // WIN) * WIN
        pre = [salu("s_mul_i32", sOb, sPos, 9216), salu("s_mul_i32", sWb, sPos, 40960)]
        if wb: pre += [salu("s_add_u32", sOb, sOb, wb * 9216), salu("s_add_u32", sWb, sWb, wb * 40960)]
        adv = [salu("s_add_u32", sPos, sPos, 1), scmp("s_cmp_eq_u32", sPos, WIN), salu("s_cselect_b32", sPos, 0, sPos)]
        g = [[salu("s_add_u32", "m0", mW, (k % NR) * 8192), dma(vw[0], WO, sWb, 0, WOFL, tag=f"w{k}")], [dma(vw[1], WO, sWb, 1024, WOFL, tag=f"w{k}")]]
        g += [[vld(fB(k, i), vo[i], O, sOb, 0, OLDFL)] for i in range(3)]
        return pre, g, adv
    def rd_A(t, k, us):
        o = (k % NR) * 8192
        return [dsr("ds_read_b64_tr_b16", fA(t, u).sub(2 * hf, 2), V(6 + 11 * (o >> 16) + u), (o & 65535) + hf * 4096) for u in us for hf in range(2)]

    HI, LO = [4, 5, 6, 7], [0, 1, 2, 3]
    P = []; e = P.append
    DBG = S(72, 4); sIdx, sSlot = S(68), S(69)
    e(raw("s_load_dwordx2 s[4:5], s[0:1], 32")); e(raw("s_load_dwordx2 s[6:7], s[0:1], 72"))
    e(raw("s_load_dwordx2 s[8:9], s[0:1], 80")); e(raw("s_load_dwordx2 s[10:11], s[0:1], 96"))
    L, Iq, G, R_, C_, T1, T2, T3, T4 = [V(64 + i) for i in range(9)]
    P += [raw(x) for x in ["v_mov_b32 v16, 0", "v_mov_b32 v66, 1", "s_mov_b32 s59, 100000", "s_and_b32 s51, s2, 7", "s_lshl_b32 s51, s51, 2", "s_add_u32 s51, s51, 128",
                           "s_cmp_lg_u32 s3, 0", "s_cbranch_scc1 L2_tk",
                           "s_mov_b64 exec, 1",
                           "buffer_atomic_add v66, v16, s[72:75], s51 offen sc0 sc1",
                           "s_waitcnt vmcnt(0)",
                           "ds_write_b32 v16, v66",
                           "s_mov_b64 exec, -1",
                           "L2_tk:",
                           "v_mbcnt_lo_u32_b32 v64, -1, 0", "v_mbcnt_hi_u32_b32 v64, -1, v64", "s_lshl_b32 s51, s3, 6", "v_add_u32 v0, s51, v64",
                           "s_waitcnt vmcnt(0) lgkmcnt(0)", "s_barrier",
                           "ds_read_b32 v65, v16", "s_waitcnt lgkmcnt(0)", "v_readfirstlane_b32 s68, v65", "s_nop 1",
                           "s_barrier",
                           "s_cmp_ge_u32 s68, 30", "s_cbranch_scc1 L2_end"]]
    e(valu("v_and_b32", Iq, 15, L)); e(valu("v_lshrrev_b32", G, 4, L))
    e(valu("v_lshrrev_b32", R_, 2, Iq)); e(valu("v_and_b32", C_, 3, L)); e(valu("v_lshlrev_b32", vlin, 4, L))
    e(salu("s_bfe_u32", sBR, S(2), "0x10002")); e(salu("s_bfe_u32", sKH, S(2), "0x10001")); e(salu("s_and_b32", t0, S(2), 1))
    e(salu("s_and_b32", t1, S(2), 7)); e(salu("s_lshl_b32", sSlot, t1, 5)); e(salu("s_add_u32", sSlot, sSlot, sIdx)); e(salu("s_xor_b32", sPart, sSlot, 64))
    e(salu("s_mul_i32", t2, sIdx, 52)); e(salu("s_lshr_b32", t2, t2, 8))
    e(salu("s_mul_i32", sMT, t0, 6)); e(salu("s_add_u32", sMT, sMT, t2)); e(salu("s_mul_i32", t3, t2, 5)); e(salu("s_sub_u32", sNT, sIdx, t3))
    e(salu("s_add_u32", t4, t2, sNT)); e(salu("s_sub_u32", t3, t4, 6)); e(scmp("s_cmp_ge_u32", t4, 6)); e(salu("s_cselect_b32", t4, t3, t4))
    e(salu("s_mul_i32", sPos, t4, 0 if "norot" in EXP2 else WIN // 6))
    e(salu("s_lshl_b32", mW, sW, 11))
    for i in range(3):
        e(salu("s_mul_i32", t0, sMT, 12)); e(salu("s_mul_i32", t1, sW, 3)); e(salu("s_add_u32", t0, t0, t1)); e(salu("s_add_u32", t0, t0, i))
        e(salu("s_mul_i32", t1, t0, 57)); e(salu("s_lshr_b32", t1, t1, 9))
        e(salu("s_mul_i32", t2, t1, 9)); e(salu("s_sub_u32", t2, t0, t2))
        e(salu("s_mul_i32", t1, t1, 32 * 55296)); e(salu("s_lshl_b32", t3, t2, 10)); e(salu("s_add_u32", t3, t3, t1))
        e(valu("v_add_u32", vo[i], t3, vlin))
    e(salu("s_lshl_b32", t0, sNT, 8)); e(salu("s_mul_i32", t1, sW, 8 * 1280)); e(salu("s_add_u32", t0, t0, t1))
    for i in range(2):
        e(valu("v_add_u32", T1, 4 * i, G))
        e(valu("v_lshlrev_b32", T2, 1, T1)); e(valu("v_xor_b32", T2, T2, Iq))
        e(valu("v_mul_u32_u24", T1, 1280, T1)); e(valu("v_lshl_add_u32", T1, T2, 4, T1)); e(valu("v_add_u32", T1, t0, T1))
        e(valu("v_subrev_u32", vw[i], 1024 * i, T1))
    CW = [raw(x) for x in ["s_getpc_b64 s[60:61]", "v_lshlrev_b32 v80, 7, v0", "v_mov_b32 v81, s61", "v_add_co_u32 v80, vcc, s60, v80", "s_nop 1",
                               "v_addc_co_u32 v81, vcc, 0, v81, vcc", "global_load_dword v82, v[80:81], off",
                               "v_add_co_u32 v80, vcc, 0x8000, v80", "s_nop 1", "v_addc_co_u32 v81, vcc, 0, v81, vcc",
                               "v_cmp_gt_u32 vcc, 72, v0", "s_and_saveexec_b64 s[60:61], vcc", "s_cbranch_execz L2_cw", "global_load_dword v83, v[80:81], off", "L2_cw:", "s_mov_b64 exec, -1"]]
    e(raw("s_waitcnt lgkmcnt(0)"))
    P += st("start", True) + st.rt(0)
    e(scmp("s_cmp_eq_u32", sBR, 0)); e(salu("s_cselect_b64", S(28, 2), S(4, 2), S(6, 2)))
    e(salu("s_mul_i32", t0, sKH, 3932160)); e(salu("s_add_u32", S(28), S(28), t0)); e(salu("s_addc_u32", S(29), S(29), 0))
    e(salu("s_mov_b32", S(30), 0 if "nowo" in EXP2 else 3932160)); e(salu("s_mov_b32", S(31), "0x20000"))
    e(salu("s_mul_i32", t0, sBR, 28311552)); e(salu("s_mul_i32", t1, sKH, 16 * 55296)); e(salu("s_add_u32", t0, t0, t1))
    e(salu("s_add_u32", S(32), S(10), t0)); e(salu("s_addc_u32", S(33), S(11), 0))
    e(salu("s_sub_u32", S(34), 0 if "noo" in EXP2 else 28311552, 0 if "noo" in EXP2 else t1)); e(salu("s_mov_b32", S(35), "0x20000"))
    def depwait(tag, mask):
        return [raw(x) for x in ["s_cmp_lg_u32 s3, 0", f"s_cbranch_scc1 L2_dj{tag}",
                           "s_mov_b64 exec, 3",
                           f"L2_dp{tag}:",
                           "buffer_load_dword v38, v36, s[72:75], 0 offen sc1",
                           "s_waitcnt vmcnt(0)",
                           f"v_and_b32 v38, {mask}, v38", f"v_and_b32 v39, {mask}, v37",
                           "v_cmp_ne_u32 vcc, v39, v38",
                           "s_nop 3",
                           "s_cmp_eq_u64 vcc, 0",
                           f"s_cbranch_scc1 L2_dg{tag}",
                           "s_sleep 12",
                           "s_sub_u32 s59, s59, 1",
                           f"s_cbranch_scc0 L2_dp{tag}",
                           f"L2_dg{tag}:",
                           "s_mov_b64 exec, -1",
                           f"L2_dj{tag}:", "s_barrier"]]
    e(salu("s_and_b32", t0, S(2), 7)); e(salu("s_lshl_b32", t0, t0, 2))
    P += [raw(x) for x in ["v_mov_b32 v36, 64", "v_mov_b32 v37, 0x100", "s_mov_b32 s52, 0x20202020", "v_writelane_b32 v36, s51, 0", "v_writelane_b32 v37, s52, 0"]]
    P += depwait("a", "0xffffff")
    P += CW
    P += st("dep", True)
    NP = 3
    for k in range(NP):
        pre, g, adv = loads(k); P += pre + [x for grp in g for x in grp] + adv
    e(valu("v_lshl_add_u32", T1, G, 2, R_)); e(valu("v_and_b32", T2, 7, T1))
    e(valu("v_lshlrev_b32", T1, 8, T1)); e(valu("v_lshl_add_u32", T1, C_, 3, T1))
    for u in range(8):
        e(salu("s_lshl_b32", t0, sKH, 2)); e(salu("s_add_u32", t0, t0, u)); e(salu("s_and_b32", t0, t0, 7))
        e(valu("v_xor_b32", T3, t0, T2)); e(valu("v_lshl_add_u32", vr[u], T3, 5, T1)); e(valu("v_add_u32", V(17 + u), 65536, vr[u])); e(valu("v_add_u32", V(28 + u), 131072, vr[u]))
    e(salu("s_mov_b32", S(36), S(8))); e(salu("s_mov_b32", S(37), S(9))); e(salu("s_mov_b32", S(38), 5898240)); e(salu("s_mov_b32", S(39), "0x20000"))
    e(salu("s_add_u32", S(40), S(10), XOFF)); e(salu("s_addc_u32", S(41), S(11), 0)); e(salu("s_mov_b32", S(42), FOFF - XOFF + 65536)); e(salu("s_mov_b32", S(43), "0x20000"))
    e(salu("s_mul_i32", t0, sMT, 192 * 2560)); e(salu("s_mul_i32", t1, sW, 48 * 2560)); e(salu("s_add_u32", t0, t0, t1))
    e(salu("s_mul_i32", t1, sBR, 1280)); e(salu("s_add_u32", t0, t0, t1))
    e(salu("s_lshl_b32", t1, sNT, 8)); e(salu("s_add_u32", t0, t0, t1)); e(salu("s_lshl_b32", t1, sKH, 7)); e(salu("s_add_u32", t0, t0, t1))
    e(valu("v_mul_u32_u24", T1, 2560, Iq)); e(valu("v_and_b32", T2, 1, G)); e(valu("v_lshl_add_u32", T1, T2, 5, T1))
    e(valu("v_lshrrev_b32", T2, 1, G)); e(valu("v_lshl_add_u32", T1, T2, 4, T1)); e(valu("v_add_u32", vout, t0, T1))
    P += [waitvm("w0"), barrier()] + rd_A(0, 0, HI)

    sc = Sched()
    NK = 96
    nxt = NP
    def work(t):
        w = []
        if t < NK: w.append((t, HI))
        if 0 <= t - SKEW < NK: w.append((t - SKEW, LO))
        return w
    PUB = NK + SKEW // 2
    for t in range(NK + SKEW):
        g0 = sc.add([mfma(acc(u, i), fA(t, u), fB(k, i), 0 if k == 0 else None) for (k, us) in work(t) for u in us for i in range(3)])
        ng = 12 * len(work(t))
        if t % 2 == 0 and t + 1 < NK:
            tags = [f"w{x}" for x in (t + 1, t + 2) if x < NK]
            sc.before(g0, [waitvm(*tags), barrier()] + (st(f"it{t//24}", True) if t % 24 == 0 else []))
        vm = []; sal = []
        for _ in range(2 if t < 2 * DEPTH and t % 2 == 0 else 1):
            if nxt >= NK or nxt > t + DEPTH: break
            if nxt == 72: sc.before(g0, depwait("b", "-1"))
            pre, g, adv = loads(nxt); nxt += 1
            g[0] = [g[0][0]] + pre + g[0][1:]; g[-1] = g[-1] + adv
            vm += g
        if t == NK:
            sc.before(g0, st("loopend", True) + [salu("s_mul_i32", t0, sSlot, 49152), salu("s_mul_i32", t1, sW, 12288), salu("s_add_u32", t0, t0, t1),
                           salu("s_add_u32", t2, t0, 4096), salu("s_add_u32", t3, t0, 8192)])
        if t in (NK, NK + 1, NK + 2):
            for n_ in range(4 * (t - NK), 4 * (t - NK) + 4):
                vm.append([vst(acc(4 + n_ // 3, n_ % 3), vlin, XS, [t0, t2, t3][n_ // 4], (n_ % 4) * 1024, "sc1")])
        if t == PUB:
            sc.before(g0, [salu("s_lshl_b32", t0, sSlot, 7), salu("s_add_u32", t0, t0, FOFF - XOFF), salu("s_lshl_b32", t1, sPart, 7), salu("s_add_u32", t1, t1, FOFF - XOFF),
                           valu("v_mov_b32", V(64), 1), scmp("s_cmp_eq_u32", sW, 0), salu("s_cselect_b32", t0, t0, "0x7fffff00"),
                           waitvm(), barrier(), raw("s_mov_b64 exec, 1", "salu"), vst(V(64), vfl, XS, t0, 0, "sc1"), raw("s_mov_b64 exec, -1", "salu")])
        for i, grp in enumerate(vm): sc.at(g0 + int(i * float(ng) / len(vm)), grp)
        ra = [[r] for (k, us) in work(t + 1) for r in rd_A(t + 1, k, us)]
        free = ng - len(vm)
        while len(ra) > free: ra = [a + b for a, b in zip(ra[::2], ra[1::2])]
        if ra: sc.mem(g0, ra, limit=g0 + ng)
    E = sc.build() + st("tail", True) + [waitvm(), waitlg()]
    E += [raw(x) for x in ["s_mov_b32 s59, 100000", "s_cmp_lg_u32 s3, 0", "s_cbranch_scc1 L2_join",
                           "s_mov_b64 exec, 1",
                           "L2_poll:",
                           "buffer_load_dword v65, v16, s[40:43], s52 offen sc1",
                           "s_waitcnt vmcnt(0)",
                           "v_readfirstlane_b32 s53, v65",
                           "s_nop 1",
                           "s_cmp_eq_u32 s53, 1",
                           "s_cbranch_scc1 L2_got",
                           "s_sleep 2",
                           "s_sub_u32 s59, s59, 1",
                           "s_cbranch_scc0 L2_poll",
                           "L2_got:",
                           "s_mov_b64 exec, -1",
                           "L2_join:", "s_barrier"]]
    E += st("flag", True)
    E += [salu("s_mul_i32", t0, sPart, 49152), salu("s_mul_i32", t1, sW, 12288), salu("s_add_u32", t0, t0, t1),
          salu("s_add_u32", t2, t0, 4096), salu("s_add_u32", t3, t0, 8192)]
    order = [(u, i) for i in range(3) for u in range(4)]
    for (u, i) in order:
        n_ = u * 3 + i
        E.append(vld(V(64 + 4 * n_, 4), vlin, XS, [t0, t2, t3][n_ // 4], (n_ % 4) * 1024, "sc1"))
    for i in range(3):
        for up in range(2):
            pk = V(40 + 4 * (i * 2 + up), 4)
            for ul in range(2):
                u = 2 * up + ul; t = acc(u, i); s_ = V(64 + 4 * (u * 3 + i), 4)
                for r in range(4): E.append(valu("v_add_f32", t.sub(r), t.sub(r), s_.sub(r)))
                E.append(valu("v_cvt_pk_bf16_f32", pk.sub(2 * ul), t.sub(0), t.sub(1)))
                E.append(valu("v_cvt_pk_bf16_f32", pk.sub(2 * ul + 1), t.sub(2), t.sub(3)))
            E.append(permswap("v_permlane16_swap_b32", pk.sub(0), pk.sub(2)))
            E.append(permswap("v_permlane16_swap_b32", pk.sub(1), pk.sub(3)))
            E.append(salu("s_mov_b32", t4, i * 16 * 2560))
            E.append(vst(pk, vout, OUT, t4, up * 64))
    if st.on: E.append(waitvm())
    E += st("fin", True) + st.rt(1) + st.dump("s3")
    out = []
    ALL = hoist_waits(P + E)
    f = {}; compute_waits(ALL, State(), f); bs = {}
    emit(ALL, f, out, bs)
    out.append("L2_end:"); out.append("s_endpgm")
    sys.stderr.write("k2 stats: %s\n" % bs)
    return out
```

```python
class Reg:
    __slots__ = ("k", "i", "n")
    def __init__(s, k, i, n=1):
        s.k, s.i, s.n = k, i, n
        assert i >= 0 and (k == "s" or i + n <= 256), (k, i, n)
    def __str__(s):
        return f"{s.k}{s.i}" if s.n == 1 else f"{s.k}[{s.i}:{s.i+s.n-1}]"
    __repr__ = __str__
    def regs(s):
        return [(s.k, s.i + j) for j in range(s.n)]
    def sub(s, off, n=1):
        assert off + n <= s.n
        return Reg(s.k, s.i + off, n)

def V(i, n=1): return Reg("v", i, n)
def A(i, n=1): return Reg("a", i, n)
def S(i, n=1): return Reg("s", i, n)
M0 = ("m0", 0)

def _rs(*ops):
    out = []
    for o in ops:
        if isinstance(o, Reg): out += o.regs()
        elif isinstance(o, Neg): out += o.r.regs()
    return out

class Neg:
    def __init__(s, r): s.r = r
    def __str__(s): return "-" + str(s.r)

class I:
    __slots__ = ("text", "kind", "rd", "wr", "tag", "tags", "srcc", "wide", "cmt")
    def __init__(s, text, kind, rd=(), wr=(), tag=None, tags=None, srcc=(), wide=False):
        s.text, s.kind, s.rd, s.wr, s.tag, s.tags, s.srcc, s.wide = text, kind, list(rd), list(wr), tag, tags, list(srcc), wide

def mfma(d, a, b, c=None):
    if c is None: c = d
    cs = c if isinstance(c, Reg) else 0
    return I(f"v_mfma_f32_16x16x32_bf16 {d}, {a}, {b}, {cs}", "mfma", rd=_rs(a, b), wr=_rs(d), srcc=_rs(c) if isinstance(c, Reg) else [])

def valu(op, d, *srcs, kind="valu", rmw=False):
    rd = _rs(*srcs) + (_rs(d) if rmw else [])
    return I(f"{op} {d}, " + ", ".join(str(x) for x in srcs), kind, rd=rd, wr=_rs(d))
def trans(op, d, *srcs): return valu(op, d, *srcs, kind="trans")
def permswap(op, a, b): return I(f"{op} {a}, {b}", "perm", rd=_rs(a, b), wr=_rs(a, b))
def accrd(d, a): return valu("v_accvgpr_read_b32", d, a)
def accwr(a, s): return valu("v_accvgpr_write_b32", a, s)
def rfl(d, s): return I(f"v_readfirstlane_b32 {d}, {s}", "rfl", rd=_rs(s), wr=_rs(d))

def salu(op, d, *srcs):
    wr = [M0] if d == "m0" else _rs(d)
    rd = _rs(*srcs) + ([M0] if "m0" in [str(x) for x in srcs] else [])
    return I(f"{op} {d}, " + ", ".join(str(x) for x in srcs), "salu", rd=rd, wr=wr)
def scmp(op, a, b): return I(f"{op} {a}, {b}", "salu", rd=_rs(a, b))
def raw(text, kind="raw"): return I(text, kind)

def _off(o):
    return f" offset:{o}" if o else ""
def dsr(op, d, addr, off=0, tag=None):
    assert 0 <= off < 65536, off
    return I(f"{op} {d}, {addr}{_off(off)}", "dsr", rd=_rs(addr), wr=_rs(d), tag=tag)
def dsw(op, addr, data, off=0, tag=None):
    assert 0 <= off < 65536, off
    return I(f"{op} {addr}, {data}{_off(off)}", "dsw", rd=_rs(addr, data), tag=tag, wide=data.n >= 3)
def dma(voff, srd, soff, off=0, fl="", tag=None):
    assert 0 <= off < 4096, off
    fl = (" " + fl) if fl else ""
    return I(f"buffer_load_dwordx4 {voff}, {srd}, {soff} offen{_off(off)}{fl} lds", "dma", rd=_rs(voff, srd, soff) + [M0], tag=tag)
def vld(d, voff, srd, soff, off=0, fl="", tag=None):
    assert 0 <= off < 4096, off
    fl = (" " + fl) if fl else ""
    op = {1: "dword", 2: "dwordx2", 4: "dwordx4"}[d.n]
    return I(f"buffer_load_{op} {d}, {voff}, {srd}, {soff} offen{_off(off)}{fl}", "vld", rd=_rs(voff, srd, soff), wr=_rs(d), tag=tag)
def vst(data, voff, srd, soff, off=0, fl="", tag=None):
    assert 0 <= off < 4096, off
    fl = (" " + fl) if fl else ""
    op = {1: "dword", 2: "dwordx2", 4: "dwordx4"}[data.n]
    i = I(f"buffer_store_{op} {data}, {voff}, {srd}, {soff} offen{_off(off)}{fl}", "vst", rd=_rs(data, voff, srd, soff), tag=tag, wide=data.n >= 3)
    return i
def waitvm(*tags): return I("", "waitvm", tags=list(tags))
def waitlg(*tags): return I("", "waitlg", tags=list(tags))
def barrier(): return I("s_barrier", "bar")
def nop(n): return I(f"s_nop {n}", "nop", tag=n)

VALU_KINDS = ("valu", "trans", "perm", "rfl")
MEM_KINDS = ("dsr", "dsw", "dma", "vld", "vst")

class State:
    def __init__(s):
        s.lg = []
        s.vm = []
    def copy(s):
        t = State(); t.lg = list(s.lg); t.vm = list(s.vm); return t
    def sig(s):
        return ([t for _, t in s.lg], [t for _, t in s.vm])

def compute_waits(insts, st, forced):
    st = st.copy()
    for idx, ins in enumerate(insts):
        nv = nl = None
        touched = set(ins.rd) | set(ins.wr) | set(ins.srcc)
        if ins.kind == "waitvm":
            if not ins.tags: nv = 0 if st.vm else None
            else:
                for j, (_, t) in enumerate(st.vm):
                    if t in ins.tags: nv = len(st.vm) - 1 - j
        elif ins.kind == "waitlg":
            if not ins.tags: nl = 0 if st.lg else None
            else:
                for j, (_, t) in enumerate(st.lg):
                    if t in ins.tags: nl = len(st.lg) - 1 - j
        elif touched:
            for j, (r, _) in enumerate(st.vm):
                if r & touched: nv = len(st.vm) - 1 - j
            for j, (r, _) in enumerate(st.lg):
                if r & touched: nl = len(st.lg) - 1 - j
        if nl is not None and nl > 15: nl = 15
        if nv is not None and nv > 63: nv = 63
        f = forced.get(idx)
        if f:
            if f[0] is not None: nv = f[0] if nv is None else min(nv, f[0])
            if f[1] is not None: nl = f[1] if nl is None else min(nl, f[1])
        if nv is not None or nl is not None:
            forced[idx] = [nv, nl]
            if nv is not None and len(st.vm) > nv: st.vm = st.vm[len(st.vm) - nv:]
            if nl is not None and len(st.lg) > nl: st.lg = st.lg[len(st.lg) - nl:]
        if ins.kind in ("dsr", "dsw"): st.lg.append((set(ins.wr), ins.tag))
        elif ins.kind in ("dma", "vld", "vst"): st.vm.append((set(ins.wr), ins.tag))
    return st

def emit(insts, forced, out, stats=None):
    pos = 0
    lastw = {}
    lastc = {}
    lastst = {}
    pend = [None, None]
    for idx, ins in enumerate(insts):
        f = forced.get(idx)
        if f:
            for k in range(2):
                if f[k] is not None: pend[k] = f[k] if pend[k] is None else min(pend[k], f[k])
        if ins.kind in ("waitvm", "waitlg", "touch"):
            continue
        if pend[0] is not None or pend[1] is not None:
            w = []
            if pend[0] is not None: w.append(f"vmcnt({pend[0]})")
            if pend[1] is not None: w.append(f"lgkmcnt({pend[1]})")
            out.append("s_waitcnt " + " ".join(w)); pos += 1
            pend = [None, None]
            if stats is not None: stats["wait"] = stats.get("wait", 0) + 1
        need = 0
        def req(p, n):
            nonlocal need
            d = pos - p - 1
            if n - d > need: need = n - d
        k = ins.kind
        for r in list(ins.rd) + list(ins.srcc):
            lw = lastw.get(r)
            if lw is None: continue
            p, pk, pd = lw
            if pk == "mfma":
                if k == "mfma" and r in ins.srcc and r not in ins.rd:
                    if pd != tuple(ins.srcc): req(p, 6)
                else: req(p, 8)
            elif pk in VALU_KINDS:
                if r[0] == "s":
                    if k in ("dma", "vld", "vst"): req(p, 5)
                    elif k in VALU_KINDS: req(p, 2)
                    else: req(p, 1)
                else:
                    if k == "mfma": req(p, 2)
                    elif k == "perm": req(p, 2)
                    elif k == "rfl": req(p, 1)
                    if pk == "trans" and k != "trans": req(p, 1)
            elif pk == "salu" and r == M0 and k == "dma": req(p, 1)
        for r in ins.wr:
            lw = lastw.get(r)
            if lw is not None and lw[1] == "mfma" and k != "mfma": req(lw[0], 8)
            if lw is not None and lw[1] == "mfma" and k == "mfma" and lw[2] != tuple(ins.wr): req(lw[0], 6)
            if r in lastc and k != "mfma": req(lastc[r], 3)
            if r in lastst: req(lastst[r], 2)
        while need > 0:
            n = min(need, 16)
            out.append(f"s_nop {n-1}"); pos += n; need -= n
            if stats is not None: stats["nop"] = stats.get("nop", 0) + n
        out.append(ins.text)
        if stats is not None: stats[k] = stats.get(k, 0) + 1
        for r in ins.wr: lastw[r] = (pos, k, tuple(ins.wr))
        for r in ins.srcc: lastc[r] = pos
        if ins.wide:
            for r in ins.rd: lastst[r] = pos
        pos += (ins.tag + 1) if k == "nop" else (0 if k == "label" else 1)
    if pend[0] is not None or pend[1] is not None:
        w = []
        if pend[0] is not None: w.append(f"vmcnt({pend[0]})")
        if pend[1] is not None: w.append(f"lgkmcnt({pend[1]})")
        out.append("s_waitcnt " + " ".join(w))

def build_loop(pro, body, epi, label, loop_tail, out, stats=None, setup=None, restart=None):
    body = hoist_waits(body)
    fp = {}
    sp = compute_waits(pro, State(), fp)
    fb = {}
    for _ in range(6):
        before = repr(sorted(fb.items()))
        e1 = compute_waits(body, sp, fb)
        e2 = compute_waits(body, e1, fb)
        e3 = compute_waits(body, e2, fb)
        if repr(sorted(fb.items())) == before: break
    else:
        raise RuntimeError("waits did not converge")
    fe = {}
    compute_waits(epi, e1, fe); compute_waits(epi, e2, fe); compute_waits(epi, e1, fe)
    if setup is not None:
        fs = {}; compute_waits(setup, State(), fs); emit(setup, fs, out, stats)
        out.append("s_nop 7"); out.append(f"{restart}:")
    emit(pro, fp, out, stats)
    out.append("s_nop 7")
    out.append(".p2align 3")
    out.append(f"{label}:")
    bs = {}
    emit(body, fb, out, bs)
    out.append("s_nop 7")
    out.extend(loop_tail)
    emit(epi, fe, out, stats)
    return bs

def is_mem(i): return i.kind in MEM_KINDS

def weave(mf, mem=None, fill=None, fixed=None, rate=1.0, start=0, drain=False):
    out = []
    mem = list(mem or []); fixed = fixed or {}
    credit = 0.0
    pend = []
    lastw = {}
    for g, m in enumerate(mf):
        for r in m.wr: lastw[r] = g
    cur = [0]
    def blocked(f):
        w = set(f.wr); r = set(f.rd)
        for x in r:
            if lastw.get(x, -99) + 3 > cur[0]: return True
        for p in pend:
            if w & (set(p.rd) | set(p.wr)) or r & set(p.wr): return True
        return False
    for g, m in enumerate(mf):
        out.append(m); cur[0] = g
        used = False
        if g in fixed:
            out.extend(fixed[g]); used = any(is_mem(x) for x in fixed[g])
        if not used and pend:
            out.append(pend.pop(0)); used = True
        elif not used and mem and g >= start:
            out.extend(mem.pop(0)); used = True
        elif used and len(pend) >= 2:
            out.append(pend.pop(0))
        if fill is not None:
            credit = min(credit, 0) + (rate - 1 if used and rate >= 2 else rate) if rate >= 1 else credit + rate
            while fill and credit > 0:
                f = fill[0]
                if is_mem(f):
                    pend.append(fill.pop(0)); continue
                if blocked(f): break
                out.append(fill.pop(0))
                credit -= cost(f)
    out.extend(pend)
    for grp in mem: out.extend(grp)
    return out

def hoist_waits(insts):
    idx = [i for i, x in enumerate(insts) if x.kind == "mfma"]
    ins_at = {}
    for a, b in zip(idx, idx[1:]):
        if b - a > 12: continue
        between = insts[a + 1:b]
        if any(x.kind in ("bar", "raw") for x in between): continue
        rd = set(insts[b].rd)
        for x in between:
            if x.kind in VALU_KINDS: rd |= set(r for r in x.rd)
        w = set()
        for x in between: w |= set(x.wr) if is_mem(x) else set()
        ins_at[a + 1] = I("", "touch", rd=[r for r in rd if r not in w])
    out = []
    for i, x in enumerate(insts):
        if i in ins_at: out.append(ins_at[i])
        out.append(x)
    return out

def cost(i):
    if i.kind == "trans": return 2
    if i.kind in ("waitvm", "waitlg"): return 0
    return 1


class Stamps:
    def __init__(s, on, sR, it, wsreg, base=72, rtb=70):
        s.on, s.sR, s.it, s.ws, s.names, s.b, s.rtb = on, sR, it, wsreg, [], base, rtb
    def __call__(s, name, always=False, it=None):
        if not s.on: return []
        i = len(s.names); s.names.append(name); assert s.b + i < 98
        L = [waitlg(), raw("s_memtime s[98:99]"), raw("s_waitcnt lgkmcnt(0)")]
        if always: L += [raw(f"s_mov_b32 s{s.b+i}, s98")]
        else: L += [raw(f"s_cmp_eq_u32 {s.sR}, {s.it if it is None else it}"), raw(f"s_cselect_b32 s{s.b+i}, s98, s{s.b+i}")]
        return L
    def rt(s, i):
        if not s.on: return []
        return [waitlg(), raw("s_memrealtime s[98:99]"), raw("s_waitcnt lgkmcnt(0)"), raw(f"s_mov_b32 s{s.rtb+i}, s98")]
    def dump(s, sW):
        if not s.on: return []
        L = [raw("s_nop 4"), raw("v_mov_b32 v1, 0"), raw(f"v_writelane_b32 v1, s{s.rtb}, 62"), raw(f"v_writelane_b32 v1, s{s.rtb+1}, 63")]
        for i in range(len(s.names)): L.append(raw(f"v_writelane_b32 v1, s{s.b+i}, {i}"))
        L += [raw(f"s_add_u32 s28, s{s.ws}, 0x8000000"), raw(f"s_addc_u32 s29, s{s.ws+1}, 0"), raw("s_mov_b32 s30, 0x100000"), raw("s_mov_b32 s31, 0x20000"),
              raw("s_lshl_b32 s51, s2, 2"), raw(f"s_add_u32 s51, s51, {sW}"), raw("s_lshl_b32 s51, s51, 8"),
              raw("v_mbcnt_lo_u32_b32 v2, -1, 0"), raw("v_mbcnt_hi_u32_b32 v2, -1, v2"), raw("v_lshlrev_b32 v2, 2, v2"), raw("s_nop 4"),
              raw("buffer_store_dword v1, v2, s[28:31], s51 offen"), raw("s_waitcnt vmcnt(0)")]
        import sys; sys.stderr.write("STAMPS " + ",".join(s.names) + "\n")
        open("stamps.txt", "a").write(",".join(s.names) + "\n")
        return L


class Sched:
    def __init__(s):
        s.mf = []; s.fixed = {}; s.pre = {}; s.segs = []
    def add(s, mlist):
        g0 = len(s.mf); s.mf += mlist; return g0
    def hasmem(s, g): return any(is_mem(x) for x in s.fixed.get(g, []))
    def at(s, g, insts):
        s.fixed.setdefault(g, []).extend(insts)
    def before(s, g, insts):
        s.pre.setdefault(g, []).extend(insts)
    def mem(s, g, groups, spacing=1, limit=None):
        last = g
        for grp in groups:
            while s.hasmem(g): g += 1
            assert limit is None or g < limit, (g, limit)
            s.at(g, grp); last = g; g += spacing
        return last
    def fill(s, g0, dl, insts, src=None, grp=None):
        s.segs.append(dict(grp=len(s.segs) if grp is None else grp, g0=g0, dl=dl, ins=list(insts), src=dl if src is None else src))
    def build(s):
        wr = {}
        for g, m in enumerate(s.mf):
            for r in m.wr: wr.setdefault(r, []).append(g)
        import bisect
        q = []
        for sg in s.segs:
            for f in sg["ins"]:
                gate = sg["g0"]; nxt = 10 ** 9
                for r in list(f.rd) + list(f.wr):
                    L = wr.get(r)
                    if not L: continue
                    i = bisect.bisect_left(L, sg["src"])
                    if i > 0 and r in f.rd: gate = max(gate, L[i - 1] + 3)
                    if i < len(L): nxt = min(nxt, L[i])
                q.append([f, gate, sg["dl"], nxt, sg["grp"]])
        for i in range(len(q) - 2, -1, -1): q[i][2] = min(q[i][2], q[i + 1][2])
        out = []; pend = []; credit = 0.0; over = 0
        def blocked(f):
            w = set(f.wr); r = set(f.rd)
            for p in pend:
                p = p[0]
                if w & (set(p.rd) | set(p.wr)) or r & set(p.wr): return True
            return False
        def put(it, g):
            assert g < it[3], ("filler after overwrite", it[0].text, g, it[3])
            out.append(it[0])
        n = len(s.mf)
        for g in range(n + 1):
            while pend and pend[0][2] <= g: put(pend.pop(0), g - 1)
            while q and q[0][2] <= g:
                while pend: put(pend.pop(0), g - 1)
                it = q.pop(0); assert it[1] - 3 < g or it[1] <= g, it[0].text
                put(it, g - 1); over += cost(it[0])
            out.extend(s.pre.get(g, []))
            if g == n: break
            out.append(s.mf[g])
            fx = s.fixed.get(g, [])
            out.extend(fx)
            used = any(is_mem(x) for x in fx)
            if pend and (not used or len(pend) >= 3):
                put(pend.pop(0), g); used = True
            cap = 1.0 if used else 2.0
            if q:
                rem = 0; need = 0.0
                for i, it in enumerate(q):
                    if it[4] != q[0][4]: break
                    rem += cost(it[0])
                    if i + 1 == len(q) or q[i + 1][2] != it[2]:
                        need = max(need, rem / max(1, it[2] - g - 2))
                credit = min(credit, 0.0) + max(cap, need)
                while q and credit > 0:
                    it = q[0]
                    if it[1] > g: break
                    if is_mem(it[0]):
                        pend.append(q.pop(0)); continue
                    if blocked(it[0]): break
                    put(q.pop(0), g); credit -= cost(it[0])
        assert not q and not pend
        s.over = over
        return out
```

```python
import sys, struct, math
sys.path.insert(0, "tools")
from kgen import *

NAME = "concat_heads__mha_block_cached__gqa_block_cached__near_ridge"
def f32bits(x): return struct.unpack("<I", struct.pack("<f", x))[0]

QP = 0; QS = 18432
RA = 55296; KB = 24832
RB = 104960
EXM = 154112; EXS = 154880
EXO = 157952
LDS1 = 162048
VSLOT = [RB, RB + 24576, RA, RA + KB]

import os
KVFL = os.environ.get("KVFL", "nt")
WQFL = os.environ.get("WQFL", "")
XFL = os.environ.get("XFL", "")
OSTFL = os.environ.get("OSTFL", "sc1")
EXP = os.environ.get("EXP", "").split(",")

import os
STAMP = os.environ.get("STAMP", "")
def k1():
    st = Stamps(STAMP.startswith("1"), "s48", int(STAMP[2:] or 2) if STAMP.startswith("1") else 0, 26, base=76)
    sW = S(3)
    X, WQ, K, Vd, O = S(28, 4), S(32, 4), S(36, 4), S(40, 4), S(44, 4)
    sR, sH, sG = S(48), S(49), S(50)
    t0, t1, t2, t3 = S(51), S(52), S(53), S(54)
    so = [S(56), S(57), S(58), S(59)]
    mX, mWQ, mK, mV = S(62), S(63), S(64), S(65)
    sC, s4k, s8k = S(66), S(67), S(68)
    DBG = S(72, 4); sSig, sSigBase, sVal = S(21), S(10), S(11)
    sO8 = S(100); sMask = S(101); sDk, sDv, sMode, sKeep, sWqSz = S(16), S(17), S(18), S(19), S(20)
    rot = [S(i) for i in (12, 13, 22, 23, 24, 25, 55, 60, 61, 69)]
    vx = [V(1 + i) for i in range(5)]
    vw = [V(6 + i) for i in range(3)]
    vk = [V(9 + i) for i in range(3)]
    vv = [V(12 + i) for i in range(3)]
    vxr = [V(15), V(16)]
    vwr = [V(17 + i) for i in range(3)]
    vvr = [V(20 + i) for i in range(3)]
    vkr, vqw, vlin, vpw, vem, ves, vesr, vso4, vso2 = [V(23 + i) for i in range(9)]
    vow = V(0); vor = V(55)
    MX = 32
    SM = 44
    TP = 56
    mx = [V(MX + i) for i in range(12)]
    sm = [V(SM + i) for i in range(12)]
    tp = [V(TP + i) for i in range(8)]
    def St(j, qt):
        if j < 4: return V(64 + (j * 9 + qt) * 4, 4)
        if j < 6: return A(((j - 4) * 9 + qt) * 4, 4)
        if j == 6: return A(72 + qt * 4, 4) if qt < 6 else V(208 + (qt - 6) * 4, 4)
        return V(220 + qt * 4, 4)
    KR = [24, 48, 72, 0, 96, 120, 144, 168]
    def Kf(j, T): return A(KR[j] + 4 * T, 4)
    def Qacc(j, qt): return V(64 + (j * 9 + qt) * 4, 4)
    def Oacc(j, qt): return A(148 + (qt * 3 + j) * 4, 4)
    def park(qt): return A(252 if qt == 8 else 204 + 12 * (qt >> 1) + 4 * (qt & 1), 4)
    def park3(i): return A(200 + 12 * i, 4)
    def g1A(s, j): return V(172 + ((s & 1) * 3 + j) * 4, 4)
    def g1B(n): return V(196 + (n % 15) * 4, 4)
    def g3A(s, j): return V(64 + ((s & 1) * 3 + j) * 4, 4)
    G3R = [96, 100, 104, 108, 112, 120, 124, 128, 132, 136, 144, 116, 140]
    def g3B(n): return A(G3R[n % 13], 4)
    def g2B(n): return A(144 + 4 * n, 4) if n < 10 else V(208 + (n % 12) * 4, 4) if n < 54 else A(192 + (n % 16) * 4, 4)
    PZ = RA + KB
    vpw0, vlin0 = V(MX + 10), V(MX + 11)
    def swoff(s_, d, c, off):
        return salu("s_add_u32", s_, d, off) if c < 4 else salu("s_sub_u32", s_, off, d)

    soi = [0]
    def nso():
        soi[0] = (soi[0] + 1) % 4
        return so[soi[0]]

    def dma_x(p):
        slot = (p + 2) % 3; s_ = rot[p]
        g = [[salu("s_add_u32", "m0", mX, QP + slot * QS),
              raw("s_mov_b32 exec_hi, 0", "salu"), dma(vx[0], X, s_, 0, XFL, tag=f"x{p}"), raw("s_mov_b32 exec_hi, -1", "salu")]]
        g += [[dma(vx[1 + i], X, s_, 512 + 1024 * i, XFL, tag=f"x{p}")] for i in range(4)]
        return g
    def dma_wq(s):
        s_ = nso()
        g = [[dma(vw[i], WQ, s_, 1024 * i, WQFL, tag=f"w{s}")] for i in range(3)]
        g[0] = [salu("s_add_u32", "m0", mWQ, (s % 4) * 12288), salu("s_mul_i32", s_, rot[s >> 1], 6144)] + \
               ([salu("s_add_u32", s_, s_, 32 * 12288)] if s & 1 else []) + g[0]
        return g
    def dma_k(j):
        g = []
        for hf in range(2):
            s_ = nso()
            h = [[dma(vk[i], K, s_, 1024 * i, KVFL, tag=f"k{j}")] for i in range(3)]
            h[0] = [salu("s_add_u32", "m0", mK, (j % 2) * KB + hf * 3136), swoff(s_, sDk, j, j * 24576 + hf * 3072)] + h[0]
            g += h
        return g
    def dma_v(c):
        g = []
        for hf in range(2):
            s_ = nso()
            h = [[dma(vv[i], Vd, s_, 1024 * i, KVFL, tag=f"v{c}")] for i in range(3)]
            h[0] = [salu("s_add_u32", "m0", mV, VSLOT[c % 4] + hf * 3072), swoff(s_, sDv, c, c * 24576 + hf * 3072)] + h[0]
            g += h
        return g
    def rd_k(j):
        g = [[dsr("ds_read_b128", Kf(j, T), vkr, (j % 2) * KB + T * 64, tag=f"kr{j}")] for T in range(6)]
        g[0] = [waitvm(f"k{j}")] + g[0]
        return g
    def flat(groups): return [i for g in groups for i in g]

    def g1_readsB(s):
        p = s >> 1; slot = (p + 2) % 3
        return [dsr("ds_read_b128", g1B(s * 9 + qt), vxr[s & 1], QP + slot * QS + qt * 2048) for qt in range(9)]
    def g1_readsA(s):
        return [dsr("ds_read_b64_tr_b16", g1A(s, j).sub(2 * hf, 2), vwr[j], (s % 4) * 12288 + hf * 1536) for j in range(3) for hf in range(2)]
    def g3_readsB(k):
        c, ks = k >> 1, k & 1
        if c == 0: return [dsr("ds_read_b128", g3B(k * 9 + qt), vlin0, (ks * 9 + qt) * 1024) for qt in range(9)]
        return [dsr("ds_read_b128", g3B(k * 9 + qt), vlin, QP + (c % 3) * QS + (ks * 9 + qt) * 1024) for qt in range(9)]
    def g3_readsA(k):
        c, ks = k >> 1, k & 1
        off = (VSLOT[c % 4] - (RB if c % 4 < 2 else RA)) + ks * 12288
        return [dsr("ds_read_b64_tr_b16", g3A(k, j).sub(2 * hf, 2), vvr[j], off + hf * 6144) for j in range(3) for hf in range(2)]

    def set_next(rn):
        L = [salu("s_mul_i32", t1, rn, 4 * 384),
             salu("s_add_u32", S(32), S(4), t1), salu("s_addc_u32", S(33), S(5), 0), salu("s_sub_u32", t2, sWqSz, t1),
             salu("s_lshl_b32", t0, rn, 2), salu("s_add_u32", t0, t0, sH), salu("s_mul_i32", t1, t0, 196608),
             salu("s_add_u32", S(36), S(6), t1), salu("s_addc_u32", S(37), S(7), 0),
             scmp("s_cmp_lt_u32", rn, 4),
             salu("s_cselect_b32", S(30), 184320, 0),
             salu("s_cselect_b32", S(34), t2, 0),
             salu("s_cselect_b32", S(38), 196608, 0)]
        if "nok" in EXP: L.append(salu("s_mov_b32", S(38), 0))
        if "nox" in EXP: L.append(salu("s_mov_b32", S(30), 0))
        if "nowq" in EXP: L.append(salu("s_mov_b32", S(34), 0))
        return L
    def set_v():
        return [salu("s_lshl_b32", t0, sR, 2), salu("s_add_u32", t0, t0, sH), salu("s_mul_i32", t1, t0, 196608),
                salu("s_add_u32", S(40), S(8), t1), salu("s_addc_u32", S(41), S(9), 0), salu("s_mov_b32", sDv, sDk)]
    def set_o():
        return [salu("s_lshl_b32", t0, sR, 2), salu("s_add_u32", t0, t0, sH), salu("s_mul_i32", t1, t0, 55296),
                salu("s_add_u32", S(44), S(14), t1), salu("s_addc_u32", S(45), S(15), 0),
                salu("s_mov_b32", S(46), 0 if "nost" in EXP else 55296)]

    def epi_qt(qt):
        F = []
        pk, tm = [(V(TP, 4), V(TP + 4, 4)), (V(MX, 4), V(MX + 4, 4))][qt & 1]
        p2 = V(MX + 8 + 2 * (qt & 1), 2)
        for j in range(3):
            for r in range(4): F.append(accrd(tm.sub(r), Oacc(j, qt).sub(r)))
            for r in range(4): F.append(valu("v_mul_f32", tm.sub(r), tm.sub(r), sm[qt]))
            d = pk.sub(2 * j, 2) if j < 2 else p2
            F.append(valu("v_cvt_pk_bf16_f32", d.sub(0), tm.sub(0), tm.sub(1)))
            F.append(valu("v_cvt_pk_bf16_f32", d.sub(1), tm.sub(2), tm.sub(3)))
        for r in range(4): F.append(accwr(park(qt).sub(r), pk.sub(r)))
        F.append(dsw("ds_write_b64", vow, p2, (qt & 1) * 1024, tag="ow"))
        if qt == 8: F.append(dsw("ds_write_b64", vow, p2, 1024, tag="ow"))
        return F
    def epi_round(i): return epi_qt(8) if i == 4 else epi_qt(2 * i + 1) + epi_qt(2 * i)
    def epi_read(i): return dsr("ds_read_b128", park3(i), vor, 0, tag="or")
    def o_stores():
        L = [vst(park(qt), vso4, O, [0, s4k, s8k][qt // 4], (qt % 4) * 1024, OSTFL, tag="ost") for qt in range(9)]
        L += [vst(park3(i), vso2, O, [0, s4k][i // 2], (i % 2) * 2048, OSTFL, tag="ost") for i in range(4)]
        L += [vst(park3(4), vso2, O, sO8, 0, OSTFL, tag="ost")]
        return L
    def exp_fill(c):
        j = c; F = []
        for qt in range(9):
            t = St(j, qt)
            if t.k == "a":
                tm = V(TP + 4 * (qt & 1), 4)
                for r in range(4): F.append(accrd(tm.sub(r), t.sub(r)))
                t = tm
            for r in range(4): F.append(valu("v_fma_f32", t.sub(r), t.sub(r), sC, Neg(mx[qt])))
            for r in range(4): F.append(trans("v_exp_f32", t.sub(r), t.sub(r)))
            if c == 0:
                F.append(valu("v_add_f32", sm[qt], t.sub(0), t.sub(1)))
                rs = [2, 3]
            else: rs = [0, 1, 2, 3]
            for r in rs: F.append(valu("v_add_f32", sm[qt], sm[qt], t.sub(r)))
            F.append(valu("v_cvt_pk_bf16_f32", t.sub(0), t.sub(0), t.sub(1)))
            F.append(valu("v_cvt_pk_bf16_f32", t.sub(1), t.sub(2), t.sub(3)))
            if c == 0: F.append(dsw("ds_write_b64", vpw0, t.sub(0, 2), qt * 1024, tag=f"p{c}"))
            else: F.append(dsw("ds_write_b64", vpw, t.sub(0, 2), QP + (c % 3) * QS + qt * 1024, tag=f"p{c}"))
        return F
    def max_tile(j, qt, k):
        t = St(j, qt); F = []
        if t.k == "a":
            tm = V(TP + 4 * (k & 1), 4)
            for r in range(4): F.append(accrd(tm.sub(r), t.sub(r)))
            t = tm
        if j == 0: F.append(valu("v_max_f32", mx[qt], t.sub(0), t.sub(1)))
        else: F.append(valu("v_max3_f32", mx[qt], mx[qt], t.sub(0), t.sub(1)))
        F.append(valu("v_max3_f32", mx[qt], mx[qt], t.sub(2), t.sub(3)))
        return F
    def sum_reduce():
        F = []
        for k in range(3):
            a, b, c_, d = sm[4 * k], sm[4 * k + 2], sm[4 * k + 1], (sm[4 * k + 3] if k < 2 else tp[0])
            F.append(permswap("v_permlane32_swap_b32", a, b)); F.append(permswap("v_permlane32_swap_b32", c_, d))
            F.append(valu("v_add_f32", a, a, b)); F.append(valu("v_add_f32", c_, c_, d))
            F.append(permswap("v_permlane16_swap_b32", a, c_))
            F.append(valu("v_add_f32", a, a, c_))
            F.append(dsw("ds_write_b32", ves, a, k * 1024, tag="sumw"))
        return F
    def sum_final():
        F = []
        for qt in range(9): F.append(dsr("ds_read_b128", V(100 + 4 * qt, 4), vesr, qt * 256))
        for qt in range(9):
            t = V(100 + 4 * qt, 4)
            F.append(valu("v_add_f32", t.sub(0), t.sub(0), t.sub(1)))
            F.append(valu("v_add_f32", t.sub(2), t.sub(2), t.sub(3)))
            F.append(valu("v_add_f32", t.sub(0), t.sub(0), t.sub(2)))
            F.append(trans("v_rcp_f32", sm[qt], t.sub(0)))
        for qt in range(1, 9, 2): F.append(valu("v_max3_f32", V(100), V(100), V(100 + 4 * qt), V(104 + 4 * qt)))
        F.append(I("v_cmp_ngt_f32 vcc, 0x49800000, v100", "valu", rd=[("v", 100)]))
        return F
    def max_init():
        F = [valu("v_mov_b32", tp[r], "0xff800000") for r in range(4)] + [valu("v_add_u32", tp[4], sKeep, vem)]
        F += [dsw("ds_write_b128", tp[4], V(TP, 4), 16 * k, tag="mi") for k in range(3)]
        return F
    def sync(*vmtags):
        return ([waitvm(*vmtags)] if vmtags else []) + [waitlg(), barrier()]

    P = []
    e = P.append
    e(raw("s_cmp_ge_u32 s2, 256")); e(raw("s_cbranch_scc1 L2_end"))
    e(raw("s_load_dwordx16 s[4:19], s[0:1], 0")); e(raw("s_load_dwordx4 s[20:23], s[0:1], 64"))
    e(raw("s_load_dwordx2 s[26:27], s[0:1], 96")); e(raw("s_load_dwordx2 s[72:73], s[0:1], 88"))
    if "nocw" not in EXP:
        P += [raw(x) for x in ["s_getpc_b64 s[60:61]", "v_lshlrev_b32 v80, 7, v0", "v_mov_b32 v81, s61", "v_add_co_u32 v80, vcc, s60, v80", "s_nop 1",
                               "v_addc_co_u32 v81, vcc, 0, v81, vcc", "global_load_dword v82, v[80:81], off offset:3072"]]
    L, Iq, G, R_, C_, T1, T2, T3, T4 = [V(64 + i) for i in range(9)]
    e(valu("v_lshrrev_b32", T1, 6, V(0))); e(rfl(sW, T1))
    e(valu("v_and_b32", L, 63, V(0))); e(valu("v_and_b32", Iq, 15, L)); e(valu("v_lshrrev_b32", G, 4, L))
    e(valu("v_lshrrev_b32", R_, 2, Iq)); e(valu("v_and_b32", C_, 3, L))
    e(salu("s_and_b32", t0, S(2), 1)); e(salu("s_lshl_b32", t0, t0, 3)); e(salu("s_lshr_b32", t1, S(2), 5)); e(salu("s_add_u32", sG, t0, t1))
    e(salu("s_bfe_u32", t0, S(2), "0x10001")); e(salu("s_lshl_b32", t0, t0, 4)); e(salu("s_bfe_u32", t1, S(2), "0x20003")); e(salu("s_add_u32", t0, t0, t1))
    e(salu("s_lshl_b32", sH, sG, 5)); e(salu("s_add_u32", sH, sH, t0)); e(salu("s_mov_b32", sR, 0))
    e(salu("s_mul_i32", mX, sW, 4608)); e(salu("s_mul_i32", mWQ, sW, 3072)); e(salu("s_add_u32", mWQ, mWQ, RB))
    e(salu("s_mul_i32", mK, sW, 6208)); e(salu("s_add_u32", mK, mK, RA)); e(salu("s_mul_i32", mV, sW, 6144))
    e(salu("s_mov_b32", sC, hex(f32bits(192 ** -0.5 * math.log2(math.e))))); e(salu("s_mov_b32", s4k, 4096)); e(salu("s_mov_b32", s8k, 8192))
    for r in (31, 35, 39, 43, 47): e(salu("s_mov_b32", S(r), "0x20000"))
    e(salu("s_mov_b32", S(42), 0 if "nov" in EXP else 196608)); e(salu("s_mov_b32", S(46), 0))
    e(salu("s_mul_i32", t0, sW, 36))
    for i in range(5):
        e(valu("v_lshrrev_b32", T1, 3, L)); e(valu("v_add_u32", T1, t0, T1))
        if i: e(valu("v_add_u32", T1, 4 + 8 * (i - 1), T1))
        e(valu("v_bfe_u32", T2, T1, 1, 3)); e(valu("v_and_b32", T3, 7, L)); e(valu("v_xor_b32", T2, T2, T3))
        e(valu("v_mul_u32_u24", T1, 1280, T1)); e(valu("v_lshl_add_u32", vx[i], T2, 4, T1))
        if i: e(valu("v_subrev_u32", vx[i], 512 + 1024 * (i - 1), vx[i]))
    e(salu("s_and_b32", t1, sW, 1)); e(salu("s_lshl_b32", t1, t1, 1))
    e(salu("s_mul_i32", t2, sW, 8 * 12288)); e(salu("s_mul_i32", t3, sW, 6144))
    for i in range(3):
        e(valu("v_add_u32", T1, 64 * i, L)); e(valu("v_mul_u32_u24", T2, 2731, T1)); e(valu("v_lshrrev_b32", T2, 16, T2))
        e(valu("v_mul_u32_u24", T3, 24, T2)); e(valu("v_sub_u32", T1, T1, T3))
        e(valu("v_bfe_u32", T3, T2, 1, 1)); e(valu("v_or_b32", T3, t1, T3)); e(valu("v_lshlrev_b32", T3, 1, T3)); e(valu("v_xor_b32", T3, T3, T1))
        e(valu("v_mul_u32_u24", T4, 12288, T2)); e(valu("v_lshl_add_u32", T4, T3, 4, T4)); e(valu("v_add_u32", T4, t2, T4))
        e(valu("v_subrev_u32", vw[i], 1024 * i, T4))
        e(valu("v_bfe_u32", T3, T2, 1, 2)); e(valu("v_xor_b32", T3, T3, T1))
        e(valu("v_mul_u32_u24", T4, 384, T2)); e(valu("v_add_u32", T4, t3, T4)); e(valu("v_subrev_u32", T4, 1024 * i, T4))
        e(valu("v_lshl_add_u32", vk[i], T3, 4, T4))
        e(valu("v_bfe_u32", T3, T2, 1, 2)); e(valu("v_lshlrev_b32", T3, 1, T3)); e(valu("v_xor_b32", T3, T3, T1))
        e(valu("v_lshl_add_u32", vv[i], T3, 4, T4))
    e(valu("v_bfe_u32", T1, Iq, 1, 3)); e(valu("v_xor_b32", T1, T1, G)); e(valu("v_lshlrev_b32", T1, 4, T1))
    e(valu("v_lshl_add_u32", vxr[0], Iq, 7, T1)); e(valu("v_xor_b32", vxr[1], 64, vxr[0]))
    e(salu("s_mul_i32", t0, sW, 3))
    for j in range(3):
        e(salu("s_add_u32", t1, t0, j))
        e(valu("v_lshrrev_b32", T1, 1, R_)); e(valu("v_and_b32", T2, 1, G)); e(valu("v_lshl_add_u32", T1, T2, 1, T1))
        e(valu("v_xor_b32", T1, t1, T1)); e(valu("v_lshlrev_b32", T1, 5, T1)); e(valu("v_lshl_add_u32", T1, C_, 3, T1))
        e(valu("v_lshl_add_u32", T2, G, 3, R_)); e(valu("v_mul_u32_u24", T2, 384, T2)); e(valu("v_add_u32", T2, T1, T2))
        e(valu("v_add_u32", vwr[j], RB, T2))
        if j < 2: e(salu("s_lshl_b32", t1, sW, 1)); e(salu("s_add_u32", t1, t1, j))
        else: e(salu("s_add_u32", t1, sW, 8))
        e(valu("v_lshrrev_b32", T1, 1, R_)); e(valu("v_and_b32", T2, 1, G)); e(valu("v_lshl_add_u32", T1, T2, 1, T1))
        e(valu("v_xor_b32", T1, t1, T1)); e(valu("v_lshlrev_b32", T1, 5, T1)); e(valu("v_lshl_add_u32", T1, C_, 3, T1))
        e(valu("v_lshl_add_u32", T2, G, 2, R_)); e(valu("v_mul_u32_u24", T2, 384, T2)); e(valu("v_add_u32", T2, T1, T2))
        e(valu("v_add_u32", vvr[j], RB, T2))
    e(valu("v_bfe_u32", T1, Iq, 1, 2)); e(valu("v_xor_b32", T1, T1, G)); e(valu("v_lshlrev_b32", T1, 4, T1))
    e(valu("v_mul_u32_u24", T2, 384, Iq)); e(valu("v_add_u32", T1, T1, T2)); e(valu("v_lshrrev_b32", T2, 3, Iq))
    e(valu("v_lshl_add_u32", T1, T2, 6, T1)); e(valu("v_add_u32", vkr, mK, T1))
    e(salu("s_mul_i32", t1, sW, 1536)); e(valu("v_lshrrev_b32", T1, 1, G)); e(valu("v_lshlrev_b32", T1, 8, T1))
    e(valu("v_lshl_add_u32", T1, Iq, 4, T1)); e(valu("v_and_b32", T2, 1, G)); e(valu("v_lshl_add_u32", T1, T2, 3, T1))
    e(valu("v_add_u32", vqw, t1, T1))
    e(valu("v_lshlrev_b32", vlin, 4, L))
    e(salu("s_lshr_b32", t1, sW, 1)); e(salu("s_mul_i32", t1, t1, 9216)); e(salu("s_and_b32", t2, sW, 1)); e(salu("s_lshl_b32", t2, t2, 3))
    e(salu("s_add_u32", t1, t1, t2)); e(valu("v_add_u32", vpw, t1, vlin))
    e(valu("v_mul_u32_u24", T1, 48, Iq)); e(valu("v_add_u32", vem, EXM, T1))
    e(salu("s_lshl_b32", t1, sW, 2)); e(salu("s_add_u32", t1, t1, EXS)); e(valu("v_add_u32", ves, t1, vlin))
    e(valu("v_lshlrev_b32", T1, 4, Iq)); e(valu("v_add_u32", vesr, EXS, T1))
    e(salu("s_mul_i32", t1, sW, 9216)); e(valu("v_add_u32", vso4, t1, vlin))
    e(salu("s_lshr_b32", t1, sW, 1)); e(salu("s_and_b32", t2, sW, 1))
    e(salu("s_mul_i32", t3, t1, 9216)); e(salu("s_add_u32", t3, t3, 36864)); e(salu("s_lshl_b32", t0, t2, 10)); e(salu("s_add_u32", t3, t3, t0))
    e(valu("v_add_u32", vso2, t3, vlin)); e(salu("s_sub_u32", sO8, 8192, t0))
    e(salu("s_lshl_b32", t1, t1, 11)); e(salu("s_add_u32", t1, t1, EXO))
    e(salu("s_add_u32", t3, t1, t0)); e(valu("v_add_u32", vor, t3, vlin))
    e(salu("s_lshl_b32", t2, t2, 3)); e(salu("s_add_u32", t1, t1, t2)); e(valu("v_add_u32", vow, t1, vlin))
    for i in range(11): e(valu("v_mov_b32", sm[i], 0))
    e(raw("s_waitcnt lgkmcnt(0)"))
    P += st("start", True) + st.rt(0)
    e(salu("s_and_b32", t0, S(2), 4)); e(scmp("s_cmp_eq_u32", t0, 0))
    e(salu("s_cselect_b64", S(28, 2), S(4, 2), S(14, 2))); e(salu("s_cselect_b64", S(6, 2), S(6, 2), S(16, 2)))
    e(salu("s_cselect_b64", S(8, 2), S(8, 2), S(18, 2))); e(salu("s_cselect_b64", S(4, 2), S(10, 2), S(20, 2)))
    e(salu("s_cselect_b32", t0, 0, 28311552)); e(salu("s_add_u32", S(14), S(26), t0)); e(salu("s_addc_u32", S(15), S(27), 0))
    e(salu("s_mul_i32", t1, sG, 184320)); e(salu("s_add_u32", S(28), S(28), t1)); e(salu("s_addc_u32", S(29), S(29), 0))
    e(salu("s_and_b32", t1, sH, 31)); e(salu("s_mul_i32", t1, t1, 384)); e(salu("s_add_u32", S(4), S(4), t1)); e(salu("s_addc_u32", S(5), S(5), 0))
    e(salu("s_sub_u32", sWqSz, 7864320, t1))
    e(salu("s_mov_b32", sMask, 0)); e(salu("s_mov_b32", sDk, 0)); e(salu("s_mov_b32", sMode, 0)); e(salu("s_mov_b32", sKeep, 0))
    e(salu("s_and_b32", t0, sH, 3)); e(salu("s_mul_i32", t0, t0, 5)); e(salu("s_lshr_b32", t0, t0, 1)); e(salu("s_and_b32", t1, sG, 7)); e(salu("s_add_u32", t0, t0, t1))
    if "norot" in EXP: e(salu("s_mov_b32", t0, 0))
    for p in range(10):
        e(salu("s_add_u32", t1, t0, p)); e(salu("s_sub_u32", t2, t1, 10)); e(scmp("s_cmp_ge_u32", t1, 10)); e(salu("s_cselect_b32", t1, t2, t1))
        e(salu("s_sub_u32", t2, t1, 10)); e(scmp("s_cmp_ge_u32", t1, 10)); e(salu("s_cselect_b32", t1, t2, t1))
        e(salu("s_lshl_b32", rot[p], t1, 7))
    e(salu("s_mov_b32", S(74), 256)); e(salu("s_mov_b32", S(75), "0x20000"))
    e(salu("s_add_u32", S(44), S(26), 96 << 20)); e(salu("s_addc_u32", S(45), S(27), 0)); e(salu("s_mov_b32", S(46), 65536))
    e(salu("s_and_b32", t0, S(2), 7)); e(salu("s_lshl_b32", t0, t0, 5)); e(salu("s_lshr_b32", t1, S(2), 3)); e(salu("s_add_u32", t0, t0, t1)); e(salu("s_lshl_b32", t0, t0, 7))
    e(valu("v_mov_b32", T1, 0))
    e(raw("s_mov_b64 exec, 1", "salu")); e(vst(T1, T1, O, t0, 0, "sc1")); e(raw("s_mov_b64 exec, -1", "salu"))
    e(salu("s_mov_b32", S(46), 0))
    e(salu("s_and_b32", t0, S(2), 7)); e(salu("s_lshl_b32", t0, t0, 2))
    e(scmp("s_cmp_eq_u32", sW, 0)); e(salu("s_cselect_b32", sSigBase, t0, "0x40000000")); e(salu("s_cselect_b32", sSig, 64, "0x40000000"))
    e(salu("s_mov_b32", sVal, 1))
    def signal():
        return [valu("v_mov_b32", sm[9], sVal), raw("s_mov_b64 exec, 1", "salu"),
                I(f"buffer_atomic_add {sm[9]}, {vlin}, {DBG}, {sSig} offen sc1", "vst", rd=sm[9].regs() + vlin.regs(), tag="sig"),
                raw("s_mov_b64 exec, -1", "salu")]
    SETUP = P
    P = [salu("s_mov_b32", t3, sKeep), salu("s_mov_b32", sKeep, 0)] + max_init() + [salu("s_mov_b32", sKeep, t3)]
    P += set_next(sR)
    P += flat(dma_wq(0) + dma_x(0) + dma_wq(1) + dma_x(1) + dma_wq(2) + dma_wq(3) + dma_k(0) + dma_x(2) + dma_k(1))
    P += sync("w0", "x0")
    P += g1_readsA(0) + g1_readsB(0)

    sc = Sched()
    kread = dict(zip(eval(os.environ.get("KRD", "[1,4,7,10,13,16]")), range(6)))
    SCH = dict(v0=20, v1=20, k6=44, st=68, v2=132, k7=168)
    SCH.update(eval(os.environ.get("SCH", "{}")))
    def place_reads(g0, rB, rA, lim):
        order = [rB[0], rA[0], rB[1], rA[1], rB[2], rA[2], rB[3], rA[3], rB[4], rA[4], rB[5], rA[5], rB[6], rB[7], rB[8]]
        g = g0
        for r in order:
            if r in rB: g = max(g, g0 + lim(rB.index(r)))
            g = sc.mem(g, [[r]]) + 1
        return g
    def spread(g0, n, groups):
        for i, grp in enumerate(groups): sc.mem(g0 + int(1 + i * (n - 1.0) / len(groups)), [grp])
    EPI = {0: (4, 1), 2: (3, 4), 5: (2, 7), 8: (1, 10), 11: (0, 13)}
    def g1m(s, qt): return [mfma(Qacc(j, qt), g1A(s, j), g1B(s * 9 + qt), 0 if s == 0 else None) for j in range(3)]
    for s in range(19):
        if s < 18: g0 = sc.add([m for qt in range(9) for m in g1m(s, qt)])
        else:
            seq = [(18, q) for q in range(4)]
            for i in range(9):
                seq.append((19, i))
                if i + 4 < 9: seq.append((18, i + 4))
            g0 = sc.add([m for (ss, qt) in seq for m in g1m(ss, qt)])
        tags = [f"w{s+1}"] + ([f"x{(s+1)//2}"] if (s + 1) % 2 == 0 else [])
        sc.before(g0, (set_v() if s == 0 else []) + sync(*tags) + (st(f"g1s{s}") if s in (0, 5, 10, 15, 18) else []))
        vm = []
        if s + 4 < 20: vm += dma_wq(s + 4)
        if s % 2 == 1 and (s - 1) // 2 + 3 < 10: vm += dma_x((s - 1) // 2 + 3)
        if s - 1 in kread: vm += dma_k(kread[s - 1] + 2)
        if s < 18:
            if vm: spread(g0, 27, vm)
            g = place_reads(g0, g1_readsB(s + 1), g1_readsA(s + 1), lambda i: 3 * (i - 6) + 2)
        else:
            rB, rA = g1_readsB(19), g1_readsA(19)
            g = g0
            for r in rA[:6] + rB: g = sc.mem(g, [[r]]) + 1
            assert not vm
        if s in EPI:
            rnd, rs = EPI[s]
            sc.fill(g0, 27 * rs, epi_round(rnd), src=0)
        for rnd, rs in EPI.values():
            if rs == s: g = sc.mem(g, [[epi_read(rnd)]]) + 1
        if s in kread:
            grp = rd_k(kread[s])
            while g + len(grp) > g0 + 27 - len([x for x in range(g, g0 + 27) if sc.hasmem(x)]) and len(grp) > 1:
                grp = [grp[0] + grp[1]] + grp[2:] if len(grp) % 2 else [a + b for a, b in zip(grp[::2], grp[1::2])]
            sc.mem(g, grp, limit=g0 + 27)
    GM = g0
    Y1, Y2 = GM + 30, GM + 47
    G2A = GM + 54; Y3 = G2A + 16
    def qw(qt):
        F = []
        for j in range(3):
            t = Qacc(j, qt)
            F += [valu("v_cvt_pk_bf16_f32", t.sub(0), t.sub(0), t.sub(1)), valu("v_cvt_pk_bf16_f32", t.sub(1), t.sub(2), t.sub(3)),
                  dsw("ds_write_b64", vqw, t.sub(0, 2), QP + qt * 6144 + j * 512, tag="q")]
        return F
    sc.before(Y1, sync())
    sc.fill(GM, Y2, [x for qt in range(5) for x in qw(qt)], src=G2A)
    sc.before(Y2, sync())
    sc.fill(Y1, Y3, [x for qt in range(5, 9) for x in qw(qt)], src=G2A)
    sc.before(Y3, [waitlg("q"), barrier()])
    sc.mem(GM + SCH["v0"], dma_v(0), 4)
    qord = [(T, qt) for T in (0, 1) for qt in range(5)] + [(T, qt) for T in (0, 1) for qt in range(5, 9)] + [(T, qt) for T in range(2, 6) for qt in range(9)]
    qord += [(T, qt) for T in range(6) for qt in range(9)]
    for n, (T, qt) in enumerate(qord):
        gi = n // 54
        sc.add([mfma(St(gi * 4 + jj, qt), Kf(gi * 4 + jj, T), g2B(n), 0 if T == 0 else None) for jj in range(4)])
    G2B = G2A + 216; G3 = G2B + 216
    sc.before(G2A, st("g2")); sc.before(G2B, st("g2b"))
    g = Y2
    for n, (T, qt) in enumerate(qord):
        g = max(g, G2A + 4 * (n - 9))
        if n >= 10: g = max(g, Y3)
        g = sc.mem(g, [[dsr("ds_read_b128", g2B(n), vlin, QP + (qt * 6 + T) * 1024, tag="qr")]]) + 1
        assert g <= G2A + 4 * n - 4 or n < 5, (n, g)
    gl = sc.mem(G2A + SCH["st"], [[x] for x in o_stores()], 4)
    assert gl < G2A + 176
    sc.at(gl + 1, set_o())
    sc.mem(G2A + SCH["v1"], dma_v(1), 4); sc.mem(G2A + SCH["k6"], rd_k(6), 2); sc.mem(G2A + SCH["k7"], rd_k(7), 2)
    sc.before(G2A + SCH["v2"], [waitlg("kr6"), barrier()])
    sc.mem(G2A + SCH["v2"], dma_v(2), 4)
    Z1 = G2B + 58; XB = G2B + 186
    F = []
    for qt in range(9):
        for j in range(4): F += max_tile(j, qt, 0)
        F.append(dsw("ds_max_f32", vem, mx[qt], 4 * qt, tag="mx"))
    F += [valu("v_add_u32", vpw0, PZ, vpw), valu("v_add_u32", vlin0, PZ, vlin)]
    sc.fill(G2B - 30, Z1, F, src=G2B)
    sc.before(Z1, [waitlg("mx", "kr7"), barrier()] + st("z1"))
    sc.mem(Z1, [[dsr("ds_read_b128", V(MX, 4), vem, 0)], [dsr("ds_read_b128", V(MX + 4, 4), vem, 16)], [dsr("ds_read_b32", V(MX + 8), vem, 32)]])
    def M(c): return G3 + 54 * c + 27
    sc.fill(Z1 + 10, XB, [valu("v_mul_f32", mx[qt], sC, mx[qt]) for qt in range(9)] + exp_fill(0), src=G2B, grp="e")
    sc.before(XB, sync("v0") + st("xb"))
    F = exp_fill(1)
    sc.fill(Z1 + 10, M(0), [x for x in F if x.kind != "dsw"], src=G2B, grp="e")
    sc.fill(XB, M(0), [x for x in F if x.kind == "dsw"], src=G2B, grp="e")
    for c in range(2, 8):
        sc.fill(XB if c <= 3 else M(c - 3), M(c - 1), exp_fill(c) + (max_init() if c == 2 else []), src=G3, grp="e")
    sc.fill(M(5), M(7), sum_reduce(), src=G3)
    sc.fill(M(7), G3 + 432, sum_final(), src=G3)
    place_reads(XB, g3_readsB(0), g3_readsA(0), lambda i: 0)
    for k in range(16):
        c, ks = k >> 1, k & 1
        g0 = sc.add([mfma(Oacc(j, qt), g3A(k, j), g3B(k * 9 + qt), 0 if k == 0 else None) for qt in range(9) for j in range(3)])
        if k == 0: sc.before(g0, st("g3"))
        vm = []
        if ks == 1:
            pre = sync(*([f"v{c+1}"] if c < 7 else ["w0", "x0"])) + st(f"M{c}")
            if c == 2: pre += signal()
            if c == 0: vm += dma_v(3)
            if c + 4 < 8: vm += dma_v(c + 4)
            if c == 3:
                pre += [salu("s_add_u32", t3, sR, 1), scmp("s_cmp_eq_u32", sMode, 1), salu("s_cselect_b32", t3, sR, t3), salu("s_cselect_b32", sDk, 98304, 0),
                        scmp("s_cmp_eq_u32", sMode, 2), salu("s_cselect_b32", t3, 4, t3)] + set_next(t3)
            if c == 4: vm += dma_wq(0) + dma_wq(1)
            if c == 5: vm += dma_x(0) + dma_wq(2) + dma_wq(3)
            if c == 6: vm += dma_x(1) + dma_k(0)
            if c == 7: vm += dma_x(2) + dma_k(1)
            if c % 2 == 1:
                d = (RA - RB) if (c + 1) % 4 == 2 else (RB - RA)
                pre += [valu("v_add_u32", vvr[j], hex(d & 0xffffffff), vvr[j]) for j in range(3)]
            sc.before(g0, pre)
            spread(g0, 54 if c < 7 else 27, vm)
        if k < 15: place_reads(g0, g3_readsB(k + 1), g3_readsA(k + 1), lambda i: 3 * (i - 4) + 2)
        else: place_reads(g0, g1_readsB(0), g1_readsA(0), lambda i: 0)
    B = sc.build() + st("end")
    sys.stderr.write("k1 overflow slots: %d\n" % sc.over)
    tail = ["s_mov_b32 s21, s10", "s_lshl_b32 s51, s48, 3", "s_lshl_b32 s11, 1, s51",
            "s_cmp_eq_u32 s18, 1", "s_cbranch_scc1 L1_m1",
            "s_cmp_eq_u32 s18, 2", "s_cbranch_scc1 L1_exit",
            "s_lshl_b32 s51, 1, s48", "s_cmp_lg_u64 vcc, 0", "s_cselect_b32 s51, s51, 0", "s_cselect_b32 s21, 0x40000000, s21", "s_or_b32 s101, s101, s51",
            "s_add_u32 s48, s48, 1", "s_cmp_lt_u32 s48, 4", "s_cbranch_scc1 L1_loop", "s_branch L1_exit",
            "L1_m1:", "s_mov_b32 s18, 2", "s_mov_b32 s19, 0", "s_mov_b32 s21, 0x40000000", "s_branch L1_loop", "L1_exit:"]
    E = st("loopend", True)
    E += [valu("v_subrev_u32", V(64), EXO, vow), valu("v_subrev_u32", V(65), EXO, vor), waitvm(), waitlg(), barrier()]
    for qt in range(9):
        tm = V(68 + 4 * (qt & 1), 4)
        for r in range(4): E.append(accrd(tm.sub(r), Oacc(2, qt).sub(r)))
        for r in range(4): E.append(valu("v_mul_f32", tm.sub(r), tm.sub(r), sm[qt]))
        E.append(valu("v_cvt_pk_bf16_f32", tm.sub(0), tm.sub(0), tm.sub(1))); E.append(valu("v_cvt_pk_bf16_f32", tm.sub(1), tm.sub(2), tm.sub(3)))
        E.append(dsw("ds_write_b64", V(64), tm.sub(0, 2), (qt >> 1) * 4096 + (qt & 1) * 1024))
        if qt == 8: E.append(dsw("ds_write_b64", V(64), tm.sub(0, 2), 4 * 4096 + 1024))
    E += sync()
    for i in range(5): E.append(dsr("ds_read_b128", V(80 + 4 * i, 4), V(65), i * 4096))
    for qt in range(9):
        pk = V(100 + 4 * qt, 4)
        for j in range(2):
            tm = V(68 + 4 * j, 4)
            for r in range(4): E.append(accrd(tm.sub(r), Oacc(j, qt).sub(r)))
            for r in range(4): E.append(valu("v_mul_f32", tm.sub(r), tm.sub(r), sm[qt]))
            E.append(valu("v_cvt_pk_bf16_f32", pk.sub(2 * j), tm.sub(0), tm.sub(1))); E.append(valu("v_cvt_pk_bf16_f32", pk.sub(2 * j + 1), tm.sub(2), tm.sub(3)))
        E.append(vst(pk, vso4, O, [0, s4k, s8k][qt // 4], (qt % 4) * 1024, OSTFL))
        if qt < 4: E.append(vst(V(80 + 4 * qt, 4), vso2, O, [0, s4k][qt // 2], (qt % 2) * 2048, OSTFL))
        if qt == 4: E.append(vst(V(96, 4), vso2, O, sO8, 0, OSTFL))
    E += [waitvm(), barrier()] + signal()
    if st.on: E += [waitvm()] + st("fin", True) + st.rt(1) + st.dump("s3")
    E += [raw(x) for x in ["s_cmp_eq_u32 s101, 0", "s_cbranch_scc1 L2_start", "s_mov_b32 s21, 0x40000000",
                           "s_ff1_i32_b32 s48, s101", "s_bitset0_b32 s101, s48", "s_mov_b32 s18, 1", f"s_mov_b32 s19, {EXO - EXM}",
                           "s_mov_b32 s16, 0", "s_mov_b32 s46, 0", "s_waitcnt vmcnt(0) lgkmcnt(0)", "s_barrier", "s_branch L1_restart"]]
    for x in EXP:
        if x.startswith("drop:"):
            B = [i for i in B if i.kind != x[5:]]
    out = []
    bs = build_loop(P, B, E, "L1_loop", tail, out, setup=SETUP, restart="L1_restart")
    out.append("L2_start:")
    sys.stderr.write("k1 body stats: %s\n" % bs)
    return out

def kd(name, vg, acc):
    return ['.amdhsa_kernel ' + name, f"  .amdhsa_next_free_vgpr {vg}", "  .amdhsa_next_free_sgpr 102", f"  .amdhsa_accum_offset {acc}",
            "  .amdhsa_group_segment_fixed_size 0", "  .amdhsa_kernarg_size 104", "  .amdhsa_user_sgpr_count 2",
            "  .amdhsa_user_sgpr_kernarg_segment_ptr 1", "  .amdhsa_system_sgpr_workgroup_id_x 1", ".end_amdhsa_kernel"]

def main(path, which):
    if STAMP: open("stamps.txt", "w").close()
    from gen2 import k2, LDS2
    hdr = open(f"cdna_kernels/{NAME}.s.ref").read().split("\n")
    hdr = [l for l in hdr if l.startswith(";") and "@launch" not in l and "Override" not in l and "grid=ceil" not in l]
    L = list(hdr)
    L.append(f"; @launch grid=(256,1,1) block=(256,1,1) lds={max(LDS1, LDS2)}")
    nm = NAME + "_kernel"
    L += ['.amdgcn_target "amdgcn-amd-amdhsa--gfx950"', ".text", f".globl {nm}", ".p2align 8", f".type {nm},@function", f"{nm}:"]
    L += k1()
    L += k2() if "2" in which else ["L2_end:", "s_endpgm"]
    L += ['.section .rodata,"a"', ".p2align 6"] + kd(nm, 512, 256)
    open(path, "w").write("\n".join(L) + "\n")

if __name__ == "__main__":
    main(sys.argv[1], sys.argv[2] if len(sys.argv) > 2 else "12")
```
